```python
import torch

def _softmax(x, axis=-1):
    return torch.softmax(x, dim=axis)

def _gelu(x):
    return torch.nn.functional.gelu(x, approximate='tanh')

def _silu(x):
    return torch.nn.functional.silu(x)

def _sigmoid(x):
    return torch.sigmoid(x)

def _layernorm(x, axis=-1, eps=1e-05):
    m = x.mean(dim=axis, keepdim=True)
    v = x.var(dim=axis, keepdim=True, unbiased=False)
    return (x - m) / torch.sqrt(v + eps)

def _scatter_add(tgt, idx, src, axis=0):
    return tgt.clone().index_add_(axis, idx, src)

def _segment_sum(src, seg, n):
    out = torch.zeros((n,) + src.shape[1:], dtype=src.dtype)
    return out.index_add_(0, seg, src)

def _pad(x, pw):
    flat = tuple((v for pair in reversed(pw) for v in pair))
    return torch.nn.functional.pad(x, flat)
kernel_name = 'parallel_sum__memory_aug_recurrent_mem_tr__glu_gated_glu__prompt'

def setup_inputs():

    _w = lambda a: (lambda t: t.to(torch.bfloat16) if t.is_floating_point() else t)(torch.as_tensor(a))

    def _A_setup():
        B, S, Dm = (1, 2048, 640)
        H, Dh = (32, 192)
        M, seg = (8, 32)
        seg = min(seg, S)
        S = S // seg * seg
        return {'x': _w((lambda *s: torch.randn(*s, dtype=torch.bfloat16) * 0.05)(B, S, Dm)), 'mem0': _w((lambda *s: torch.randn(*s, dtype=torch.bfloat16) * 1.6)(B, M, Dm)), 'Wq': _w((lambda *s: torch.randn(*s, dtype=torch.bfloat16) * 0.8)(Dm, H, Dh) * Dm ** (-0.5)), 'Wk': _w((lambda *s: torch.randn(*s, dtype=torch.bfloat16) * 0.8)(Dm, H, Dh) * Dm ** (-0.5)), 'Wv': _w((lambda *s: torch.randn(*s, dtype=torch.bfloat16) * 1.6)(Dm, H, Dh) * Dm ** (-0.5)), 'Wo': _w((lambda *s: torch.randn(*s, dtype=torch.bfloat16) * 1.6)(H, Dh, Dm) * (H * Dh) ** (-0.5)), 'seg_len': seg}
    _A_in = _A_setup()

    def _B_setup():
        B, S, D, F = (1, 2048, 640, 1536)
        return {'x': _w((lambda *s: torch.randn(*s, dtype=torch.bfloat16) * 0.05)(B, S, D)), 'w_gate': _w((lambda *s: torch.randn(*s, dtype=torch.bfloat16) * 0.05)(D, F)), 'w_up': _w((lambda *s: torch.randn(*s, dtype=torch.bfloat16) * 0.05)(D, F)), 'w_down': _w((lambda *s: torch.randn(*s, dtype=torch.bfloat16) * 0.05)(F, D))}
    _B_in = _B_setup()
    return {'A_x': _A_in['x'], 'A_mem0': _A_in['mem0'], 'A_Wq': _A_in['Wq'], 'A_Wk': _A_in['Wk'], 'A_Wv': _A_in['Wv'], 'A_Wo': _A_in['Wo'], 'A_seg_len': _A_in['seg_len'], 'B_x': _B_in['x'], 'B_w_gate': _B_in['w_gate'], 'B_w_up': _B_in['w_up'], 'B_w_down': _B_in['w_down']}

def reference(A_x, A_mem0, A_Wq, A_Wk, A_Wv, A_Wo, A_seg_len, B_x, B_w_gate, B_w_up, B_w_down):

    def _A_ref(x, mem0, Wq, Wk, Wv, Wo, seg_len):
        B, S, Dm = x.shape
        H, Dh = (Wq.shape[1], Wq.shape[2])
        M = mem0.shape[1]
        scale = Dh ** (-0.5)
        n_seg = S // seg_len
        L = M + seg_len
        idx = torch.arange(L)
        mask = (idx[:, None] < M) | (idx[:, None] >= idx[None, :])
        mem = mem0
        outs = []
        for s in range(n_seg):
            xs = x[:, s * seg_len:(s + 1) * seg_len, :].clone()
            h = torch.concatenate([mem, xs], axis=1)
            q = torch.einsum('btd,dhe->bhte', h, Wq)
            k = torch.einsum('btd,dhe->bhte', h, Wk)
            v = torch.einsum('btd,dhe->bhte', h, Wv)
            scores = torch.einsum('bhqe,bhke->bhqk', q, k) * scale
            scores = torch.where(mask[None, None], scores, -1000000000.0)
            p = _softmax(scores, axis=-1)
            o = torch.einsum('bhqk,bhke->bhqe', p, v)
            o = torch.einsum('bhte,hed->btd', o, Wo)
            mem = o[:, :M, :].clone()
            outs.append(o[:, M:, :])
        return torch.concatenate(outs, axis=1)

    def _B_ref(x, w_gate, w_up, w_down):
        g = torch.einsum('bsd,df->bsf', x, w_gate)
        u = torch.einsum('bsd,df->bsf', x, w_up)
        h = _sigmoid(g) * u
        return torch.einsum('bsf,fd->bsd', h, w_down)
    x = A_x
    xn = _layernorm(x, axis=-1)
    return x + _A_ref(xn, A_mem0, A_Wq, A_Wk, A_Wv, A_Wo, A_seg_len) + _B_ref(xn, B_w_gate, B_w_up, B_w_down)
```

```python
from common import *
import math
SPIN=200000
OPT=set()
UX0=1; UXS=1
NSTEP=64
def wreg(n,vbase):
    return f'a[{8*n}:{8*n+7}]' if n<32 else f'v[{vbase+8*(n-32)}:{vbase+8*(n-32)+7}]'
def wreg2(n,vbase,o):
    return f'a[{8*n+o}:{8*n+o+1}]' if n<32 else f'v[{vbase+8*(n-32)+o}:{vbase+8*(n-32)+o+1}]'
TM=lambda:'s_memtime' if 'cyc' in OPT else 's_memrealtime'
def stamp(a,prof,i):
    if prof: a(f'{TM()} s[{62+2*a.ns}:{63+2*a.ns}]'); a.ns+=1
def stamp_end(a,prof):
    if not prof: return
    sk=a.lab('se')
    a(f'{TM()} s[{62+2*a.ns}:{63+2*a.ns}]\ns_and_b32 s2, s16, 7\ns_cmp_eq_u32 s2, 5\ns_cbranch_scc0 {sk}\ns_waitcnt lgkmcnt(0)')
    a(f's_lshl_b32 s28, s12, 5\ns_add_u32 s28, s28, s13\ns_add_u32 s28, s28, {a.pv}\ns_lshl_b32 s28, s28, 2\ns_add_u32 s28, s28, s14\ns_lshl_b32 s28, s28, 9\ns_lshr_b32 s2, s16, 3\ns_lshl_b32 s2, s2, 6\ns_add_u32 s28, s28, s2\ns_add_u32 s28, s28, {PROF+0x20000}\ns_mov_b64 exec, 1\nv_mov_b32 v0, 0')
    for i in range(a.ns+1): a(f'v_mov_b32 v1, s{62+2*i}\nbuffer_store_dword v1, v0, s[8:11], s28 offen offset:{4*i}')
    a(f's_mov_b64 exec, -1\n{sk}:')
def check(a,regs,tmp,retry):
    r=list(regs); t=tmp; outs=[]
    while len(r)>1:
        if len(r)>=3:
            a(f'v_max3_u32 v{t}, v{r[0]}, v{r[1]}, v{r[2]}'); r=r[3:]+[t]
        else:
            a(f'v_max_u32 v{t}, v{r[0]}, v{r[1]}'); r=[t]
        t+=1
    ok=a.lab('ok')
    a(f'v_cmp_eq_u32 vcc, -1, v{r[0]}\ns_cbranch_vccz {ok}\ns_sub_u32 s45, s45, 1\ns_cbranch_scc0 {retry}\ns_mov_b32 s45, 0\n{ok}:')
def gather(a,RAW,RR,G01,G2,L16,prof,isV=False):
    l1=a.lab('pl'); l2=a.lab('pr'); go=a.lab('g'); skip=a.lab('gs')
    nc=3 if isV else 2; nd=4*nc+2; U=12 if isV else 16; st=3072 if isV else 4096
    def ld(R,s1,s2):
        for c in range(nc):
            so,of=(s1,c*st) if c*st<4096 else (s2,c*st-4096)
            a(f'buffer_load_dwordx4 v[{R+4*c}:{R+4*c+3}], v{G01}, s[8:11], {so} offen offset:{of} sc1')
        a(f'buffer_load_dwordx2 v[{R+4*nc}:{R+4*nc+1}], v{G2}, s[8:11], {s1} offen sc1')
    if isV:
        ns=a.ns; a(f's_cmp_eq_u32 s14, 0\ns_cbranch_scc1 {skip}')
    if 'sent' in OPT:
        l0=a.lab('ps')
        a(f'v_bfe_u32 v4, v{L16}, 4, 4\nv_mul_u32_u24 v4, 640, v4\n{l0}:\nbuffer_load_dword v5, v4, s[8:11], s30 offen offset:636 sc1\ns_waitcnt vmcnt(0)')
        check(a,[5],0,l0)
        stamp(a,prof,0)
        a(f'{l1}:'); ld(RAW,'s30','s34'); ld(RR,'s31','s35'); a(f's_waitcnt vmcnt({nc+1})')
        check(a,[RAW+4*c for c in range(nc+1)],0,l1)
    else:
        a(f'{l1}:'); ld(RAW,'s30','s34'); a('s_waitcnt vmcnt(0)')
        check(a,[RAW+4*c for c in range(nc+1)],0,l1)
        stamp(a,prof,0)
        ld(RR,'s31','s35')
    for i in range(nd): a(f'v_lshlrev_b32 v{U+2*i}, 16, v{RAW+i}\nv_and_b32 v{U+1+2*i}, 0xffff0000, v{RAW+i}')
    a(f's_branch {go}\n{l2}:'); ld(RR,'s31','s35'); a(f'{go}:\ns_waitcnt vmcnt(0)')
    check(a,[RR+4*c for c in range(nc+1)],0,l2)
    stamp(a,prof,1)
    dot=lambda i:a(f'v_dot2_f32_bf16 v{U+2*i}, v{RR+i}, s42, v{U+2*i}\nv_dot2_f32_bf16 v{U+1+2*i}, v{RR+i}, s43, v{U+1+2*i}')
    cvt=lambda i:a(f'v_cvt_pk_bf16_f32 v{RAW+i}, v{U+2*i}, v{U+1+2*i}')
    for c in range(nc):
        for i in range(4*c,4*c+4): dot(i)
        for i in range(4*c,4*c+4): cvt(i)
        a(f'ds_write_b128 v{G01}, v[{RAW+4*c}:{RAW+4*c+3}] offset:{c*st}')
    dot(nd-2); dot(nd-1); a('s_nop 0'); cvt(nd-2); a('s_nop 0'); cvt(nd-1)
    a(f'ds_write_b64 v{G2}, v[{RAW+nd-2}:{RAW+nd-1}]')
    a(f'{skip}:\ns_waitcnt lgkmcnt(0)\ns_barrier'); a.q=[]
    stamp(a,prof,2)
def step_offsets(a):
    a(f's_and_b32 s28, s16, 3\ns_lshl_b32 s28, s28, 14\ns_add_u32 s30, s28, s36\ns_add_u32 s31, s30, {MREM-MLOC}\ns_add_u32 s34, s30, 4096\ns_add_u32 s35, s31, 4096')
def common_setup(a,G01,G2,AR,IDX,L16):
    a(f'''v_lshlrev_b32 v{G01}, 4, v0
    v_add_u32 v1, 1024, v0
    v_lshlrev_b32 v{G2}, 3, v1
    v_and_b32 v2, 63, v0
    v_lshlrev_b32 v{L16}, 4, v2
    v_lshrrev_b32 v3, 4, v2
    v_and_b32 v4, 15, v2
    v_bfe_u32 v5, v4, 1, 1
    v_lshrrev_b32 v6, 2, v4
    v_and_b32 v7, 1, v4
    v_lshl_add_u32 v6, v6, 1, v7
    v_lshlrev_b32 v{AR}, 8, v3
    v_lshl_add_u32 v{AR}, v5, 7, v{AR}
    v_lshl_add_u32 v{AR}, v6, 4, v{AR}
    v_mov_b32 v{IDX}, 0x4444
    v_mov_b32 v7, 0xeeee
    v_cmp_eq_u32 vcc, 1, v5
    s_nop 1
    v_cndmask_b32 v{IDX}, v{IDX}, v7, vcc
    s_mov_b32 s42, 0x00003f80
    s_mov_b32 s43, 0x3f800000
    s_mov_b32 s40, 0x00ff00ff
    s_mov_b32 s41, 0x00ff00ff
    s_mov_b32 s45, {SPIN}
    s_lshl_b32 s36, s12, 16
    s_add_u32 s36, s36, {MLOC}
    s_mov_b32 s16, 0''')
def load_weights(a,blocks,dst,T0,tileoff_expr):
    NS=6; SL=24576
    def issue(b):
        B=blocks[b]
        for i in range(B['n']):
            a(f's_mul_i32 s28, s14, {B["n"]*1024}\ns_add_u32 m0, s28, {(b%NS)*SL+i*1024}\ns_add_u32 s29, s{B["sb"]}, {B["soff"]}')
            a(f'buffer_load_dwordx4 v{B["voff"]+i}, s[{B["srd"]}:{B["srd"]+3}], s29 offen lds')
    for b in range(min(NS-1,len(blocks))): issue(b)
    for b,B in enumerate(blocks):
        later=sum(blocks[x]['n'] for x in range(b+1,min(b+NS-1,len(blocks))))
        a(f's_waitcnt vmcnt({later}) lgkmcnt(0)\ns_barrier')
        if b+NS-1<len(blocks): issue(b+NS-1)
        a(f'v_add_u32 v{T0}, {(b%NS)*SL}, v{B["tra"]}')
        for (toff,op) in B['ops']:
            for R in range(2):
                for P in range(2):
                    a(f'ds_read_b64_tr_b16 {dst(op,4*R+2*P)}, v{T0} offset:{(32*R+2*P)*B["rs"]+toff}')
    a('s_waitcnt lgkmcnt(0)\ns_barrier')
def tr_addr(a,d,rs,wavemul):
    a(f'''v_lshrrev_b32 v8, 1, v3
    v_lshlrev_b32 v8, 4, v8
    v_and_b32 v9, 1, v3
    v_lshl_add_u32 v8, v9, 2, v8
    v_lshrrev_b32 v9, 2, v4
    v_and_b32 v10, 1, v9
    v_add_u32 v8, v8, v10
    v_lshrrev_b32 v10, 1, v9
    v_lshl_add_u32 v8, v10, 3, v8
    v_mul_u32_u24 v8, {rs}, v8
    v_and_b32 v9, 3, v2
    v_lshl_add_u32 v8, v9, 3, v8
    s_mul_i32 s28, s14, {wavemul}
    v_add_u32 v{d}, s28, v8''')
def qkv_dma_offsets(a,base):
    for i in range(6):
        a(f'''s_mul_i32 s28, s14, 384
        s_add_u32 s28, s28, {64*i}
        v_add_u32 v8, s28, v2
        v_mul_u32_u24 v9, 0xaaab, v8
        v_lshrrev_b32 v9, 20, v9
        v_mul_u32_u24 v10, 24, v9
        v_sub_u32 v10, v8, v10
        v_mul_u32_u24 v9, 12288, v9
        v_lshl_add_u32 v{base+i}, v10, 4, v9''')
def seg_flag(a,segreg,t=36):
    a(f's_lshl_b32 s28, {segreg}, 7\ns_add_u32 s28, s28, {F_SEG}\ns_mov_b64 exec, 1\nv_mov_b32 v{t}, 0\nv_mov_b32 v{t+1}, 1\nbuffer_atomic_add v{t+1}, v{t}, s[8:11], s28 offen sc1\ns_mov_b64 exec, -1')
def vu_flag(a,segreg,L16,t):
    lp=a.lab('fu'); ok=a.lab('fo')
    a(f's_lshr_b32 s28, {segreg}, 2\ns_lshl_b32 s28, s28, 5\ns_lshl_b32 s29, s12, 4\ns_add_u32 s28, s28, s29\ns_lshl_b32 s28, s28, 2\ns_add_u32 s28, s28, {F_VU}\nv_bfe_u32 v{t}, v{L16}, 4, 4\nv_lshlrev_b32 v{t}, 2, v{t}\n{lp}:\nbuffer_load_dword v{t+1}, v{t}, s[8:11], s28 offen sc1\ns_waitcnt vmcnt(0)\nv_cmp_eq_u32 vcc, 0, v{t+1}\ns_cbranch_vccz {ok}\ns_sub_u32 s45, s45, 1\ns_cbranch_scc0 {lp}\ns_mov_b32 s45, 0\n{ok}:')
def prof_out(a,prof):
    if 'rt' in OPT: a(f's_memrealtime s[98:99]\ns_memtime s[100:101]\ns_waitcnt lgkmcnt(0)\ns_sub_u32 s94, s100, s90\ns_lshl_b32 s28, s12, 5\ns_add_u32 s28, s28, s46\ns_lshl_b32 s28, s28, 4\ns_add_u32 s28, s28, {PROF+0x10000}\nv_mov_b32 v0, 0\nv_mov_b32 v4, s94\nv_mov_b32 v5, s96\nv_mov_b32 v6, s98\nv_mov_b32 v7, s92\nbuffer_store_dwordx4 v[4:7], v0, s[8:11], s28 offen')
    return
    a(f's_lshl_b32 s28, s12, 5\ns_add_u32 s28, s28, s46\ns_lshl_b32 s28, s28, 2\ns_add_u32 s28, s28, s14\ns_lshl_b32 s28, s28, 7\ns_add_u32 s28, s28, {PROF}\nv_mbcnt_lo_u32_b32 v0, -1, 0\nv_lshlrev_b32 v0, 2, v0\ns_mov_b64 exec, 0xffff\nbuffer_store_dword v{a.pv}, v0, s[8:11], s28 offen\nv_mov_b32 v1, s45\nbuffer_store_dword v1, v0, s[8:11], s28 offen offset:64')
def prof_init(a,prof,pv):
    a.ns=0; a.pv=pv
    if 'rt' in OPT: a('s_memrealtime s[96:97]\ns_memtime s[90:91]')

def gen_S(a,slow,prof,overlap=False):
    LS=' sc1' if slow else ''
    G01,G2,AR,IDX,L16,QW,WL,FR,ST,ST2,QR=range(120,131)
    WV=136; NREG=47
    KXL=16384; QXL=28672; WLDS=40960; QST=10240; KST=13312; ZA=147456
    common_setup(a,G01,G2,AR,IDX,L16)
    order=[6*k+T for k in range(4) for T in range(6)]+[6*k+T for T in range(6) for k in range(4,10)]
    ldsops=[order[i] for i in (3,7,11,15,19,23,27,31,35,39,43,46,49)]
    regops=[n for n in range(60) if n not in ldsops]
    def dst(n,o):
        if n in regops: return wreg2(regops.index(n),WV,o)
        j=ldsops.index(n); r=16+8*j+o
        return f'v[{r}:{r+1}]'
    qkv_dma_offsets(a,130); tr_addr(a,AR+0 if False else 12,384,96)
    a('s_mul_i32 s47, s15, 384')
    blocks=[]
    for k in range(10):
        for m in range(2):
            blocks.append(dict(srd=20+4*m,sb=47,soff=k*64*12288,rs=384,n=6,voff=130,tra=12,ops=[(32*t,6*k+3*m+t) for t in range(3)]))
    load_weights(a,blocks,dst,13,None)
    a(f's_mul_i32 s28, s14, {13*2048}\ns_add_u32 s28, s28, {WLDS}\nv_add_u32 v{WL}, s28, v{L16}')
    for j in range(13):
        for hlf in range(2): a(f'ds_write_b128 v{WL}, v[{16+8*j+4*hlf}:{19+8*j+4*hlf}] offset:{2048*j+1024*hlf}')
    a('s_waitcnt lgkmcnt(0)')
    a(f'''v_lshrrev_b32 v8, 2, v4
    v_and_b32 v8, 1, v8
    v_lshlrev_b32 v8, 7, v8
    v_lshl_add_u32 v8, v3, 5, v8
    v_lshrrev_b32 v9, 3, v4
    v_lshl_add_u32 v8, v9, 3, v8
    v_and_b32 v9, 3, v4
    v_lshl_add_u32 v8, v9, 1, v8
    s_mul_i32 s28, s14, 768
    s_add_u32 s28, s28, {QST}
    v_add_u32 v{QW}, s28, v8
    v_and_b32 v9, 7, v4
    v_lshlrev_b32 v9, 4, v9
    v_lshl_add_u32 v{FR}, v3, 7, v9
    s_and_b32 s28, s14, 2
    s_mul_i32 s28, s28, 3072
    v_add_u32 v{QR}, s28, v{L16}''')
    w0=a.lab('w0'); wd=a.lab('wd')
    a(f'v_mov_b32 v10, 0xf149f2ca\nv_mov_b32 v11, 0\nv_cmp_gt_u32 vcc, 2, v3\ns_nop 1')
    for i in range(4): a(f'v_cndmask_b32 v{116+i}, v10, v11, vcc')
    a(f's_cmp_eq_u32 s14, 0\ns_cbranch_scc1 {w0}')
    a(f's_sub_u32 s28, s14, 1\ns_lshl_b32 s28, s28, 4\nv_add_u32 v8, s28, v4\nv_lshrrev_b32 v9, 1, v3\nv_lshlrev_b32 v9, 4, v9\nv_and_b32 v12, 1, v3\nv_lshl_add_u32 v9, v12, 2, v9')
    for t in range(2):
        for j in range(4): a(f'v_add_u32 v13, {8*t+j}, v9\nv_cmp_le_u32 vcc, v13, v8\ns_nop 1\nv_cndmask_b32 v{108+4*t+j}, v10, v11, vcc')
    a(f'''v_lshrrev_b32 v9, 1, v3
    v_lshlrev_b32 v9, 10, v9
    v_lshl_add_u32 v9, v8, 5, v9
    v_lshl_add_u32 v{ST}, v12, 4, v9
    v_lshlrev_b32 v9, 4, v8
    v_lshl_add_u32 v9, v3, 3, v9
    v_add_u32 v{ST2}, 2048, v9
    s_branch {wd}
    {w0}:''')
    a(f'''v_lshrrev_b32 v8, 3, v4
    v_lshl_add_u32 v{ST}, v8, 3, v{FR}
    v_and_b32 v9, 7, v4
    v_lshlrev_b32 v9, 4, v9
    v_lshl_add_u32 v9, v3, 2, v9
    v_add_u32 v{ST2}, 512, v9
    v_mov_b32 v9, {ZA-QST}
    v_cndmask_b32 v132, v9, v{FR}, s[40:41]
    v_cndmask_b32 v133, v{FR}, v9, s[40:41]
    v_lshrrev_b32 v9, 2, v4
    v_and_b32 v12, 1, v4
    v_lshl_add_u32 v9, v9, 1, v12
    v_lshlrev_b32 v9, 4, v9
    v_lshl_add_u32 v134, v3, 7, v9
    v_cndmask_b32 v112, v10, v11, s[40:41]
    v_cndmask_b32 v113, v10, v11, s[40:41]
    v_mov_b32 v114, 0
    v_mov_b32 v115, 0
    v_mov_b32 v116, {hex(fbits(192**-0.5*math.log2(math.e)))}
    v_mov_b32 v12, 0
    v_mov_b32 v13, 0
    v_mov_b32 v14, 0
    v_mov_b32 v15, 0
    v_add_u32 v9, {ZA}, v{L16}
    ds_write_b128 v9, v[12:15]
    ds_write_b128 v9, v[12:15] offset:1024
    ds_write_b128 v9, v[12:15] offset:2048
    {wd}:
    s_mov_b32 s44, {hex(fbits(192**-0.5*math.log2(math.e)))}
    s_mul_i32 s37, s15, 12288
    s_lshl_b32 s50, s12, 20
    s_mul_i32 s28, s13, 10240
    s_add_u32 s50, s50, s28
    s_add_u32 s50, s50, {UR}
    s_mul_i32 s51, s15, 10240
    s_add_u32 s51, s51, {UM}
    v_add_u32 v135, 4096, v{G01}
    s_mul_i32 s38, s13, 640
    s_lshl_b32 s28, s12, 16
    s_add_u32 s38, s38, s28
    s_add_u32 s38, s38, {PR}
    s_mul_i32 s39, s15, 2560
    s_add_u32 s39, s39, {PX}''')
    def dma_kq(segreg):
        if overlap:
            lp=a.lab('fq'); ok=a.lab('fo')
            a(f's_and_b32 s28, {segreg}, 3\ns_cbranch_scc1 {ok}\ns_lshr_b32 s28, {segreg}, 2\ns_lshl_b32 s28, s28, 5\ns_add_u32 s28, s28, s15\ns_lshl_b32 s28, s28, 2\ns_add_u32 s28, s28, {F_QK}\nv_mov_b32 v36, 0\n{lp}:\nbuffer_load_dword v37, v36, s[8:11], s28 offen sc1\ns_waitcnt vmcnt(0)\nv_cmp_ne_u32 vcc, 0, v37\ns_cbranch_vccnz {ok}\ns_sub_u32 s45, s45, 1\ns_cbranch_scc0 {lp}\ns_mov_b32 s45, 0\n{ok}:')
        a(f's_mul_i32 s28, {segreg}, {32*12288}\ns_add_u32 s28, s28, s37\ns_add_u32 s29, s28, {QX}\ns_add_u32 s28, s28, {KX}')
        if 'nokq' in OPT: return
        for i in range(12):
            a(f's_mov_b32 m0, {KXL+1024*i}\ns_nop 0\nbuffer_load_dwordx4 v{L16}, s[8:11], s28 offen sc1 lds\ns_add_u32 s28, s28, 1024')
        for i in range(12):
            a(f's_mov_b32 m0, {QXL+1024*i}\ns_nop 0\nbuffer_load_dwordx4 v{L16}, s[8:11], s29 offen sc1 lds\ns_add_u32 s29, s29, 1024')
    NW=10 if 'warm' in OPT else 0
    def warm_u(segreg):
        if overlap: vu_flag(a,segreg,L16,36)
        a(f's_mul_i32 s28, {segreg}, {32*40960}\ns_add_u32 s28, s28, s48')
        for i in range(NW): a(f'buffer_load_dword v{4}, v{108+i%5}, s[8:11], s28 offen offset:{64*(i//5)}')
    a(f's_mul_i32 s48, s12, {16*40960}\ns_add_u32 s48, s48, {UX}\ns_mul_i32 s28, s13, 40\ns_mul_i32 s29, s14, 160')
    for i,d in enumerate((131,119,117)):
        a(f'''v_and_b32 v8, {63 if i<2 else 31}, v2
        v_add_u32 v8, {64*i}, v8
        v_add_u32 v8, s29, v8
        v_and_b32 v13, 1, v8
        v_lshrrev_b32 v8, 1, v8
        v_mul_u32_u24 v9, 0xccd, v8
        v_lshrrev_b32 v9, 16, v9
        v_mul_u32_u24 v10, 20, v9
        v_sub_u32 v10, v8, v10
        v_cmp_le_u32 vcc, 10, v10
        v_subrev_u32 v11, 10, v10
        s_nop 0
        v_cndmask_b32 v10, v10, v11, vcc
        v_cndmask_b32 v11, 0, 1, vcc
        v_lshl_add_u32 v10, v10, 2, s28
        v_mul_u32_u24 v9, 40960, v9
        v_lshl_add_u32 v9, v11, 10, v9
        v_lshrrev_b32 v11, 5, v10
        v_lshl_add_u32 v9, v11, 11, v9
        v_and_b32 v11, 31, v10
        v_lshl_add_u32 v9, v11, 5, v9
        v_lshl_add_u32 v{d}, v13, 6, v9''')
    n3=a.lab('n3'); a(f's_cmp_eq_u32 s14, 3\ns_cbranch_scc0 {n3}'); dma_kq('s16'); a(f'{n3}:')
    prof_init(a,prof,0)
    top=a.lab('Sstep'); a(f'.p2align 6\n{top}:')
    step_offsets(a)
    for i in range(12): a(f'v_pk_mov_b32 v[{48+2*i}:{49+2*i}], 0, 0')
    a(f's_sub_u32 s49, s16, 1\ns_max_i32 s49, s49, 0\ns_mul_i32 s53, s49, {32*10240}\ns_add_u32 s53, s53, s51\ns_and_b32 s52, s49, 3\ns_lshl_b32 s52, s52, 18\ns_add_u32 s52, s52, s50\ns_add_u32 s54, s16, 2\ns_and_b32 s54, s54, 3\ns_lshl_b32 s54, s54, 18\ns_add_u32 s54, s54, s50\ns_add_u32 s55, s16, 1\ns_min_u32 s55, s55, {NSTEP-1}\ns_mul_i32 s55, s55, {32*40960}\ns_add_u32 s55, s55, s48')
    stg={}
    def rdw(j):
        r=72+8*(j%3); stg[ldsops[j]]=r
        a.lds(f'ds_read_b128 v[{r}:{r+3}], v{WL} offset:{2048*j}',('w',j)); a.lds(f'ds_read_b128 v[{r+4}:{r+7}], v{WL} offset:{2048*j+1024}',('w',j))
    for j in range(3): rdw(j)
    gather(a,96,36,G01,G2,L16,prof)
    ard=lambda k:a.lds(f'ds_read_b128 v[{4*k}:{4*k+3}], v{AR} offset:{1024*k}',('A',k))
    ard(0); ard(1)
    def tri(op,r,sreg,fl):
        return [f'buffer_{op}_dwordx4 v[{r(0)}:{r(0)+3}], v{G01}, s[8:11], {sreg} offen{fl}',
                f'buffer_{op}_dwordx4 v[{r(1)}:{r(1)+3}], v135, s[8:11], {sreg} offen{fl}',
                f'buffer_{op}_dwordx2 v[{r(2)}:{r(2)+1}], v{G2}, s[8:11], {sreg} offen{fl}']
    cp_ld=tri('load',lambda i:96+4*i,'s52',' sc1'); cp_st=tri('store',lambda i:96+4*i,'s53',' sc1'); po_st=tri('store',lambda i:40,'s54',LS)
    po_st[0]='v_mov_b32 v40, -1\nv_mov_b32 v41, -1\nv_mov_b32 v42, -1\nv_mov_b32 v43, -1\n'+po_st[0]
    nxt=3
    def post(T):
        b=48+4*T; off=T%3*256+(KST-QST if T>=3 else 0)
        return [f'v_pk_add_f32 v[{b}:{b+1}], v[{b}:{b+1}], v[{b+2}:{b+3}]\nv_cvt_pk_bf16_f32 v{b+1}, v{b}, v{b+1}',
          lambda:(a.lds(f'ds_write_b16 v{QW}, v{b+1} offset:{off}'),a.lds(f'ds_write_b16_d16_hi v{QW}, v{b+1} offset:{off+16}'))]
    pend=[]
    for i,n in enumerate(order):
        k,T=divmod(n,6)
        toks=[('A',k)]
        if n in ldsops: toks.append(('w',ldsops.index(n)))
        a.need(*toks)
        B=f'v[{stg[n]}:{stg[n]+7}]' if n in ldsops else wreg(regops.index(n),WV)
        a(f'v_smfmac_f32_16x16x64_bf16 v[{48+4*T}:{51+4*T}], v[{4*k}:{4*k+3}], {B}, v{IDX}')
        if n in ldsops and nxt<13: rdw(nxt); nxt+=1
        if i in (30,31) and 'nokr' not in OPT: a.lds(f'ds_read_b128 v[{40+4*(i-30)}:{43+4*(i-30)}], v{L16} offset:{KXL+1024*(i-20)}')
        if 24<=i<28 and 'nokr' not in OPT: a.lds(f'ds_read_b128 v[{4*(i-24)}:{4*(i-24)+3}], v{L16} offset:{KXL+1024*(i-24)}')
        if i>=54 and 'nokr' not in OPT: a.lds(f'ds_read_b128 v[{4*k}:{4*k+3}], v{L16} offset:{KXL+1024*k}')
        if i<8: ard(i+2)
        if i in (1,3,5): a(cp_ld[(i-1)//2])
        if i in (9,11,13): a(po_st[(i-9)//2])
        if i==22: a('s_waitcnt vmcnt(3)')
        if i in (22,25,28) and 'nopers' not in OPT: a(cp_st[(i-22)//3])
        if 'warm' in OPT and i in (32,36,40): a(f'buffer_load_dword v118, v{131 if i==32 else 119 if i==36 else 117}, s[8:11], s55 offen')
        if i in (23,41): stamp(a,prof,0)
        if i>=24 and k==9: pend.append([i+8,post(T)])
        if pend and i>=pend[0][0]:
            x=pend[0][1].pop(0); x() if callable(x) else a(x)
            if not pend[0][1]: pend.pop(0)
    stamp(a,prof,3)
    assert len(pend)==2
    a('s_nop 0')
    for x in pend[0][1]: x() if callable(x) else a(x)
    a('s_nop 1')
    for x in pend[1][1]: x() if callable(x) else a(x)
    a('s_waitcnt lgkmcnt(0)\ns_barrier'); a.q=[]
    stamp(a,prof,4)
    wx=a.lab('wx'); w3=a.lab('w3'); wend=a.lab('wend')
    a(f's_cmp_eq_u32 s14, 0\ns_cbranch_scc0 {wx}')
    def scores():
        for k in range(6):
            a.need(('q',k),('k',k))
            for t in range(2):
                f=6*t+k; C=f'v[{108+4*t}:{111+4*t}]' if k==0 else f'v[{96+4*t}:{99+4*t}]'
                a(f'v_mfma_f32_16x16x32_bf16 v[{96+4*t}:{99+4*t}], v[{4*f}:{4*f+3}], v[{72+4*k}:{75+4*k}], {C}')
            C='0' if k==0 else 'v[104:107]'
            a(f'v_mfma_f32_16x16x32_bf16 v[104:107], v[{48+4*k}:{51+4*k}], v[{72+4*k}:{75+4*k}], {C}')
    def xl(op,r,t,full):
        if not full: a(f's_nop 1\n{op}_dpp v{r}, v{r}, v{r} row_ror:8 row_mask:0xf bank_mask:0xf')
        for sw in ('16','32'):
            a(f'v_mov_b32 v{t}, v{r}\ns_nop 1\nv_permlane{sw}_swap_b32 v{r}, v{t}\n{op} v{r}, v{r}, v{t}')
    def qk(k):
        a.lds(f'ds_read_b128 v[{72+4*k}:{75+4*k}], v132 offset:{QST+512*k}',('q',k))
        if k<2: a.lds(f'ds_read_b128 v[{100+4*k}:{103+4*k}], v133 offset:{QST+512*k}',('r',k))
        a.lds(f'ds_read_b128 v[{48+4*k}:{51+4*k}], v134 offset:{KST+512*k}',('k',k))
    qk(0); qk(1)
    a(f's_and_b32 s28, s16, 3\ns_lshl_b32 s28, s28, 14\ns_add_u32 s32, s28, s38')
    for k in range(6):
        r=100+4*k if k<2 else 4*(k-2)
        a.need(('q',k))
        a(f'v_mfma_f32_16x16x32_bf16 v[96:99], v[{4*k}:{4*k+3}], v[{72+4*k}:{75+4*k}], {"0" if k==0 else "v[96:99]"}')
        if k<4: a.lds(f'ds_read_b128 v[{4*k}:{4*k+3}], v133 offset:{QST+512*(k+2)}',('r',k+2))
        a.need(('r',k))
        a(f'v_mfma_f32_16x16x32_bf16 v[96:99], v[{24+4*k}:{27+4*k}], v[{r}:{r+3}], v[96:99]')
        if k<4: qk(k+2)
        a.need(('k',k))
        a(f'v_mfma_f32_16x16x32_bf16 v[108:111], v[{48+4*k}:{51+4*k}], v[{72+4*k}:{75+4*k}], {"v[112:115]" if k==0 else "v[108:111]"}')
    ns0=a.ns; stamp(a,prof,0)
    a('s_nop 6\nv_max3_f32 v6, v96, v97, v98\nv_max_f32 v7, v108, v109\nv_max3_f32 v6, v6, v99, v7'); xl('v_max_f32',6,7,False)
    a('v_mul_f32 v6, s44, v6')
    for b in (96,98,108): a(f'v_pk_fma_f32 v[{b}:{b+1}], v[{b}:{b+1}], v[116:117], v[6:7] op_sel_hi:[1,0,0] neg_lo:[0,0,1] neg_hi:[0,0,1]')
    for j in (96,97,98,99,108,109): a(f'v_exp_f32 v{j}, v{j}')
    a('v_pk_add_f32 v[6:7], v[96:97], v[98:99]\nv_pk_add_f32 v[6:7], v[6:7], v[108:109]\nv_add_f32 v6, v6, v7'); xl('v_add_f32',6,7,False)
    a('v_rcp_f32 v6, v6\ns_nop 0')
    for b in (96,98,108): a(f'v_pk_mul_f32 v[{b}:{b+1}], v[{b}:{b+1}], v[6:7] op_sel_hi:[1,0]')
    a(f'v_cvt_pk_bf16_f32 v8, v96, v97\nv_cvt_pk_bf16_f32 v9, v98, v99\nv_cvt_pk_bf16_f32 v10, v108, v109')
    a(f'buffer_store_dwordx2 v[8:9], v{ST}, s[8:11], s32 offen{LS}\ns_mov_b64 exec, s[40:41]\nbuffer_store_dword v10, v{ST2}, s[8:11], s32 offen{LS}\ns_mov_b64 exec, -1')
    stamp(a,prof,0)
    a(f's_barrier\ns_branch {wend}\n{wx}:'); a.q=[]; a.ns=ns0; stamp(a,prof,0); stamp(a,prof,0)
    a(f's_cmp_eq_u32 s14, 3\ns_cbranch_scc1 {w3}')
    for k in range(6): a.lds(f'ds_read_b128 v[{72+4*k}:{75+4*k}], v{QR} offset:{QXL+1024*k}',('q',k)); a.lds(f'ds_read_b128 v[{48+4*k}:{51+4*k}], v{FR} offset:{KST+512*k}',('k',k))
    a(f's_mul_i32 s28, s16, {32*2560}\ns_add_u32 s32, s28, s39')
    scores()
    a('s_nop 6')
    a('s_nop 1\nv_add_f32 v104, v104, v116\nv_add_f32 v105, v105, v116\nv_add_f32 v106, v106, v116\nv_add_f32 v107, v107, v116')
    a('v_max3_f32 v6, v96, v97, v98\nv_max3_f32 v7, v99, v100, v101\nv_max3_f32 v8, v102, v103, v104\nv_max3_f32 v9, v105, v106, v107\nv_max3_f32 v6, v6, v7, v8\nv_max_f32 v6, v6, v9'); xl('v_max_f32',6,7,True)
    a('v_mul_f32 v6, s44, v6')
    for j in range(12): a(f'v_fma_f32 v{96+j}, v{96+j}, s44, -v6')
    for j in range(12): a(f'v_exp_f32 v{96+j}, v{96+j}')
    a('v_add_f32 v6, v96, v97')
    for j in range(2,12): a(f'v_add_f32 v6, v6, v{96+j}')
    xl('v_add_f32',6,7,True)
    a('v_rcp_f32 v6, v6\ns_nop 0')
    for j in range(12): a(f'v_mul_f32 v{96+j}, v{96+j}, v6')
    for j in range(6): a(f'v_cvt_pk_bf16_f32 v{8+j}, v{96+2*j}, v{97+2*j}')
    a(f'buffer_store_dwordx4 v[8:11], v{ST}, s[8:11], s32 offen sc1\ns_mov_b32 exec_hi, 0\nbuffer_store_dwordx2 v[12:13], v{ST2}, s[8:11], s32 offen sc1\ns_mov_b32 exec_hi, -1')
    a(f's_barrier\ns_branch {wend}\n{w3}:'); a.q=[]
    a(f's_add_u32 s28, s16, 2\ns_and_b32 s28, s28, 3\ns_lshl_b32 s28, s28, 14\ns_add_u32 s28, s28, s38\nv_mov_b32 v0, -1\nv_mov_b32 v1, -1\nv_mov_b32 v2, -1\nv_mov_b32 v3, -1\ns_mov_b32 exec_hi, 0xff\nbuffer_store_dwordx4 v[0:3], v{L16}, s[8:11], s28 offen{LS}\ns_mov_b32 exec_hi, -1')
    def ur_ld(segexpr):
        a(f'{segexpr}\ns_and_b32 s28, s49, 3\ns_lshl_b32 s28, s28, 18\ns_add_u32 s28, s28, s50')
        for i in range(10): a(f'buffer_load_dwordx4 v[{8+4*i}:{11+4*i}], v{L16}, s[8:11], s28 offen offset:{(i%4)*1024} sc1'+('\ns_add_u32 s28, s28, 4096' if i%4==3 else ''))
    def um_st():
        a(f's_mul_i32 s28, s49, {32*10240}\ns_add_u32 s28, s28, s51')
        for i in range(10): a(f'buffer_store_dwordx4 v[{8+4*i}:{11+4*i}], v{L16}, s[8:11], s28 offen offset:{(i%4)*1024} sc1'+('\ns_add_u32 s28, s28, 4096' if i%4==3 else ''))
    nf=a.lab('nf'); a(f's_barrier\ns_cmp_lt_u32 s16, 2\ns_cbranch_scc1 {nf}\ns_sub_u32 s29, s16, 2'); seg_flag(a,'s29',104); a(f'{nf}:')
    a(f's_add_u32 s33, s16, 1\ns_min_u32 s33, s33, {NSTEP-1}'); dma_kq('s33')
    a(f'{wend}:')
    stamp_end(a,prof)
    a(f's_add_u32 s16, s16, 1\ns_cmp_lt_u32 s16, {NSTEP}\ns_cbranch_scc1 {top}')
    e3=a.lab('e3'); rt=a.lab('rt')
    a(f's_waitcnt vmcnt(0)\ns_barrier\ns_cmp_eq_u32 s14, 3\ns_cbranch_scc0 {e3}\ns_mov_b32 s29, {NSTEP-2}'); seg_flag(a,'s29',104)
    a(f'{rt}:'); ur_ld(f's_mov_b32 s49, {NSTEP-1}'); a('s_waitcnt vmcnt(0)'); check(a,[8+4*i for i in range(10)],0,rt); um_st()
    a(f's_waitcnt vmcnt(0)\ns_mov_b32 s29, {NSTEP-1}'); seg_flag(a,'s29',104); a(f'{e3}:')
    a('s_mov_b32 s46, s13')
    prof_out(a,prof)
import struct
def fbits(x): return struct.unpack('<I',struct.pack('<f',x))[0]

def gen_V(a,slow,prof,overlap=False):
    LS=' sc1' if slow else ''
    G01,G2,AR,IDX,L16,VW,WL,UA,UA2,US,RU,RU2,RP,RPM,RW,FI,FO=range(148,165)
    WV=168; VST=10240; WLDS=16384; NL=17
    common_setup(a,G01,G2,AR,IDX,L16)
    order=[3*k+T for k in range(4) for T in range(3)]+[3*k+T for T in range(3) for k in range(4,10)]+list(range(30,60))
    ldsops=[order[i] for i in range(60) if i%7 in (2,5)][:NL]; assert len(ldsops)==NL
    regops=[n for n in range(60) if n not in ldsops]
    hold={}
    for j,n in enumerate(ldsops): hold[n]=14+8*j if j<16 else None
    def dst(n,o):
        if n in regops: return wreg2(regops.index(n),WV,o)
        r=12+8*ldsops.index(n)+o
        return f'v[{r}:{r+1}]'
    qkv_dma_offsets(a,153); tr_addr(a,165,384,96); tr_addr(a,166,256,64)
    for i in range(4):
        a(f's_lshl_b32 s28, s14, 4\ns_add_u32 s28, s28, {4*i}\nv_add_u32 v8, s28, v3\nv_mul_u32_u24 v8, 1280, v8\nv_lshl_add_u32 v{159+i}, v4, 4, v8')
    a('s_mul_i32 s47, s15, 384\ns_mul_i32 s48, s15, 245760')
    blocks=[]
    for k in range(10):
        blocks.append(dict(srd=20,sb=47,soff=k*64*12288,rs=384,n=6,voff=153,tra=165,ops=[(32*t,3*k+t) for t in range(3)]))
    for k2 in range(3):
        for j in range(5):
            blocks.append(dict(srd=24,sb=48,soff=k2*64*1280+j*256,rs=256,n=4,voff=159,tra=166,ops=[(32*t,30+3*(2*j+t)+k2) for t in range(2)]))
    load_weights(a,blocks,dst,167,None)
    a(f's_mul_i32 s28, s14, {NL*2048}\ns_add_u32 s28, s28, {WLDS}\nv_add_u32 v{WL}, s28, v{L16}')
    for j in range(NL):
        for hlf in range(2): a(f'ds_write_b128 v{WL}, v[{12+8*j+4*hlf}:{15+8*j+4*hlf}] offset:{2048*j+1024*hlf}')
    a('s_waitcnt lgkmcnt(0)')
    a(f'''v_lshrrev_b32 v8, 3, v4
    v_lshlrev_b32 v8, 7, v8
    v_lshl_add_u32 v8, v3, 5, v8
    v_and_b32 v9, 7, v4
    v_lshl_add_u32 v8, v9, 1, v8
    s_mul_i32 s28, s14, 768
    s_add_u32 s28, s28, {VST}
    v_add_u32 v{VW}, s28, v8
    s_mul_i32 s28, s13, 40
    v_add_u32 v10, s28, v4
    v_add_u32 v11, 16, v10
    v_add_u32 v12, s28, v9
    v_add_u32 v12, 32, v12''')
    for (src,d) in ((10,UA),(11,UA2),(12,167)):
        a(f'''v_lshrrev_b32 v13, 5, v{src}
        v_lshlrev_b32 v13, 11, v13
        v_and_b32 v14, 31, v{src}
        v_lshl_add_u32 v13, v14, 5, v13
        v_lshrrev_b32 v14, 1, v3
        v_lshl_add_u32 v13, v14, 10, v13
        v_and_b32 v14, 1, v3
        v_lshl_add_u32 v{d}, v14, 4, v13''')
    a(f'''v_lshrrev_b32 v13, 1, v3
    v_lshlrev_b32 v13, 11, v13
    v_and_b32 v14, 1, v3
    v_lshl_add_u32 v13, v14, 8, v13
    v_lshl_add_u32 v13, v4, 4, v13
    s_lshl_b32 s28, s14, 9
    v_add_u32 v{US}, s28, v13
    v_lshlrev_b32 v13, 4, v4
    v_lshl_add_u32 v13, v3, 2, v13
    v_add_u32 v166, s28, v13
    s_lshl_b32 s28, s14, 2
    v_add_u32 v13, s28, v3
    v_mul_u32_u24 v14, 10240, v13
    v_lshl_add_u32 v{RU}, v10, 4, v14
    v_lshl_add_u32 v{RU2}, v12, 4, v14
    v_mul_u32_u24 v14, 640, v13
    v_lshl_add_u32 v14, v9, 4, v14
    v_add_u32 v{RPM}, 512, v14
    s_mul_i32 s28, s14, 2560
    v_lshlrev_b32 v14, 7, v3
    v_lshl_add_u32 v14, v9, 4, v14
    v_lshrrev_b32 v15, 3, v4
    v_mul_u32_u24 v15, 640, v15
    v_add3_u32 v{RP}, s28, v14, v15
    s_mul_i32 s28, s14, 1536
    s_add_u32 s28, s28, 155648
    v_add_u32 v{RW}, s28, v14
    v_lshrrev_b32 v13, 3, v2
    v_lshlrev_b32 v13, 8, v13
    v_lshl_add_u32 v{FI}, v9, 4, v13
    v_subrev_u32 v{G01}, 1024, v{G01}
    v_subrev_u32 v13, 64, v0
    v_and_b32 v13, 127, v13
    v_add_u32 v13, 1152, v13
    v_lshlrev_b32 v{G2}, 3, v13
    v_add_u32 v{FI}, 155648, v{FI}
    s_mul_i32 s28, s13, 640
    v_add_u32 v{FO}, s28, v{L16}
    s_lshl_b32 s37, s12, 4
    s_lshl_b32 s28, s14, 2
    s_add_u32 s37, s37, s28
    s_mul_i32 s37, s37, 40960
    s_add_u32 s37, s37, {UX}
    s_lshl_b32 s38, s12, 20
    s_add_u32 s38, s38, {UR}
    s_mul_i32 s46, s13, 10240
    s_mul_i32 s39, s15, 10240
    s_add_u32 s39, s39, {UM}
    s_xor_b32 s49, s12, 1
    s_lshl_b32 s49, s49, 16
    s_add_u32 s49, s49, {MREM}''')
    for i in range(12): a(f'v_mov_b32 v{136+i}, 0')
    a('s_mov_b32 s58, -1\ns_bitcmp0_b32 s14, 0\ns_cselect_b32 s59, 0xffff, 0')
    def ux_flag(segreg):
        if overlap: vu_flag(a,segreg,L16,100)
    ux_flag('s16')
    prof_init(a,prof,16)
    top=a.lab('Vstep'); a(f'.p2align 6\n{top}:')
    step_offsets(a)
    for i in range(6): a(f'v_pk_mov_b32 v[{88+2*i}:{89+2*i}], 0, 0')
    stg={}
    def rdw(j):
        r=100+8*(j%3); stg[ldsops[j]]=r
        a.lds(f'ds_read_b128 v[{r}:{r+3}], v{WL} offset:{2048*j}',('w',j)); a.lds(f'ds_read_b128 v[{r+4}:{r+7}], v{WL} offset:{2048*j+1024}',('w',j))
    for j in range(3): rdw(j)
    a(f'''s_mul_i32 s50, s16, {32*40960}
    s_add_u32 s50, s50, s37
    s_add_u32 s28, s16, 2
    s_and_b32 s28, s28, 3
    s_lshl_b32 s51, s28, 18
    s_add_u32 s51, s51, s38
    s_add_u32 s51, s51, s46
    s_lshl_b32 s28, s28, 14
    s_add_u32 s60, s28, s36
    s_add_u32 s61, s28, s49
    s_sub_u32 s54, s16, 1
    s_max_i32 s54, s54, 0
    s_mul_i32 s54, s54, {32*10240}
    s_add_u32 s54, s54, s39
    s_and_b32 s28, s16, 3
    s_lshl_b32 s55, s28, 18
    s_add_u32 s55, s55, s38
    s_add_u32 s56, s55, s46
    s_lshl_b32 s57, s28, 14
    s_add_u32 s57, s57, s36
    s_add_u32 s57, s57, {PR-MLOC}''')
    gather(a,124,40,G01,G2,L16,prof,True)
    ard=lambda k:a.lds(f'ds_read_b128 v[{4*k}:{4*k+3}], v{AR} offset:{1024*k}',('A',k))
    ard(0); ard(1); ard(2)
    def st3(regs,sreg,fl):
        o=[]
        for i in range(3):
            pre='s_mov_b32 exec_hi, 0\n' if i==2 else ''; post='\ns_mov_b32 exec_hi, -1' if i==2 else f'\ns_add_u32 {sreg}, {sreg}, 4096'
            r=regs(i); o.append(f'{pre}buffer_store_dwordx4 v[{r}:{r+3}], v{US}, s[8:11], {sreg} offen{fl}{post}')
        return o
    uxl=[]
    for n in range(4):
        for t,ar in enumerate((UA,UA2,167)):
            ld=f'buffer_load_dwordx4 v[{40+12*n+4*t}:{43+12*n+4*t}], v{ar}, s[8:11], s50 offen'
            uxl.append(f's_mov_b64 exec, s[40:41]\n{ld}\ns_mov_b64 exec, -1\ns_add_u32 s50, s50, 40960' if t==2 else ld)
    if 'noux' in OPT: uxl=['s_nop 0']*12
    pers=st3(lambda i:136+4*i,'s54',' sc1')
    nxt=[3]
    def mf(n,acc,A):
        toks=[A[1]]
        if n in ldsops: toks.append(('w',ldsops.index(n)))
        a.need(*toks)
        B=f'v[{stg[n]}:{stg[n]+7}]' if n in ldsops else wreg(regops.index(n),WV)
        a(f'v_smfmac_f32_16x16x64_bf16 v[{acc}:{acc+3}], v[{A[0]}:{A[0]+3}], {B}, v{IDX}')
        if n in ldsops and nxt[0]<NL: rdw(nxt[0]); nxt[0]+=1
    def post1(T):
        b=88+4*T
        return [f'v_pk_add_f32 v[{b}:{b+1}], v[{b}:{b+1}], v[{b+2}:{b+3}]\nv_cvt_pk_bf16_f32 v{b+1}, v{b}, v{b+1}',
          lambda:(a.lds(f'ds_write_b16 v{VW}, v{b+1} offset:{256*T}'),a.lds(f'ds_write_b16_d16_hi v{VW}, v{b+1} offset:{256*T+16}'))]
    pend=[]
    for i,n in enumerate(order[:30]):
        k,T=divmod(n,3)
        mf(n,88+4*T,(4*k,('A',k)))
        if i<7: ard(i+3)
        if i>=UX0 and (i-UX0)%UXS==0 and uxl: a(uxl.pop(0))
        if i in (11,20) and 'fine' in OPT: stamp(a,prof,0)
        if i>=12 and k==9: pend.append([i+8,post1(T)])
        if pend and i>=pend[0][0]:
            x=pend[0][1].pop(0); x() if callable(x) else a(x)
            if not pend[0][1]: pend.pop(0)
    stamp(a,prof,3)
    zero=lambda r:a(f'v_pk_mov_b32 v[{r}:{r+1}], 0, 0')
    zero(0); zero(2)
    for x in pend[0][1]: x() if callable(x) else a(x)
    zero(4); zero(6); zero(8)
    for x in pend[1][1]: x() if callable(x) else a(x)
    for r in range(10,40,2): zero(r)
    np_=a.lab('np'); a(f's_cmp_eq_u32 s14, 0\ns_cbranch_scc0 {np_}\ns_mov_b32 exec_hi, 0xff\nbuffer_store_dwordx4 v[168:171], v{FO}, s[8:11], s60 offen{LS}\nbuffer_store_dwordx4 v[168:171], v{FO}, s[8:11], s61 offen sc1\ns_mov_b32 exec_hi, -1\n{np_}:'.replace('v[168:171]','v[144:147]').replace('s_mov_b32 exec_hi, 0xff','v_mov_b32 v144, -1\nv_mov_b32 v145, -1\nv_mov_b32 v146, -1\nv_mov_b32 v147, -1\ns_mov_b32 exec_hi, 0xff'))
    a('s_waitcnt lgkmcnt(0)\ns_barrier'); a.q=[]
    for k in range(3): a.lds(f'ds_read_b128 v[{124+4*k}:{127+4*k}], v{AR} offset:{VST+1024*k}',('V',k))
    stamp(a,prof,4)
    def post(T): return f'v_pk_add_f32 v[{4*T}:{4*T+1}], v[{4*T}:{4*T+1}], v[{4*T+2}:{4*T+3}]\nv_cvt_pk_bf16_f32 v{136+T}, v{4*T}, v{4*T+1}'
    sw1=lambda b:f'v_permlane32_swap_b32 v{b}, v{b+2}\nv_permlane32_swap_b32 v{b+1}, v{b+3}'
    sw2=lambda b:f'v_permlane16_swap_b32 v{b}, v{b+1}\nv_permlane16_swap_b32 v{b+2}, v{b+3}'
    ust=st3(lambda i:136+4*i,'s56',LS)
    for n in range(30,60):
        T,k2=divmod(n-30,3)
        mf(n,4*T,(124+4*k2,('V',k2)))
        if k2==0 and uxl and T<6: a(uxl.pop(0))
        if n in (39,49,59) and 'fine' in OPT: stamp(a,prof,0)
        if k2==2 and T>=3: a(post(T-3))
        if (T,k2)==(7,1): a(sw1(136))
        if (T,k2)==(8,0): a(sw2(136)); a(ust[0])
    a(post(7)); a('s_nop 0'); a(post(8)); a(sw1(140)); a(post(9)); a(sw2(140)); a(ust[1]); a(sw1(144)); a('s_nop 1'); a(sw2(144)); a(ust[2])
    assert not uxl
    stamp(a,prof,5)
    if 'ack' in OPT: a('s_waitcnt vmcnt(3)'); stamp(a,prof,5); a('s_waitcnt vmcnt(0)'); stamp(a,prof,5)
    last=a.lab('last')
    a(f's_cmp_eq_u32 s16, {NSTEP-1}\ns_cbranch_scc1 {last}')
    if overlap:
        nfl=a.lab('nfl'); a(f's_add_u32 s33, s16, 1\ns_and_b32 s28, s33, 3\ns_cbranch_scc1 {nfl}'); ux_flag('s33'); a(f'{nfl}:')
    pu=a.lab('pu'); pp=a.lab('pp'); pc=a.lab('pc')
    def ldp():
        for n in range(2): a(f'buffer_load_dwordx4 v[{8*n}:{8*n+3}], v{RP}, s[8:11], s57 offen offset:{1280*n} sc1')
        a(f'buffer_load_dwordx4 v[16:19], v{RPM}, s[8:11], s57 offen sc1')
    a(f's_add_u32 s28, s16, 1\ns_and_b32 s28, s28, 3\ns_lshl_b32 s28, s28, 14\ns_add_u32 s52, s28, s36\ns_add_u32 s53, s28, s49')
    a(f'{pu}:\nbuffer_load_dwordx4 v[124:127], v{RU}, s[8:11], s55 offen sc1\nbuffer_load_dwordx4 v[128:131], v{RU}, s[8:11], s55 offen offset:256 sc1\nbuffer_load_dwordx4 v[132:135], v{RU2}, s[8:11], s55 offen sc1')
    ldp(); a('s_waitcnt vmcnt(3)')
    check(a,[124,128,132],20,pu)
    stamp(a,prof,6)
    a(f's_branch {pc}\n{pp}:'); ldp(); a(f'{pc}:\ns_waitcnt vmcnt(0)')
    check(a,[0,8,16],20,pp)
    stamp(a,prof,7)
    for n in range(5):
        for t in range(3):
            A=40+12*n+4*t if n<4 else 124+4*t
            C='0' if n==0 else f'v[{88+4*t}:{91+4*t}]'
            a(f'v_mfma_f32_16x16x32_bf16 v[{88+4*t}:{91+4*t}], v[{A}:{A+3}], v[{4*n}:{4*n+3}], {C}')
            if n in (0,2) and t==0:
                for i in range(4): a(f'v_mov_b32_dpp v{4*n+4+i}, v{4*n+i} row_ror:8 row_mask:0xf bank_mask:0xf')
    a('s_mov_b64 exec, s[40:41]\ns_nop 4')
    for t in range(3): a(f'ds_write_b128 v{RW}, v[{88+4*t}:{91+4*t}] offset:{512*t}')
    a('s_mov_b64 exec, -1\ns_waitcnt lgkmcnt(0)\ns_barrier')
    stamp(a,prof,8)
    nx=a.lab('nx'); fl=a.lab('fl')
    a(f's_cmp_eq_u32 s14, 0\ns_cbranch_scc0 {nx}')
    for w in range(4):
        for h in range(2): a(f'ds_read_b128 v[{8*w+4*h}:{8*w+4*h+3}], v{FI} offset:{1536*w+128*h}')
    pa=lambda d,x:a('\n'.join(f'v_pk_add_f32 v[{d+2*i}:{d+2*i+1}], v[{d+2*i}:{d+2*i+1}], v[{x+2*i}:{x+2*i+1}]' for i in range(4)))
    a('s_waitcnt lgkmcnt(4)'); pa(0,8); a('s_waitcnt lgkmcnt(2)'); pa(0,16); a('s_waitcnt lgkmcnt(0)'); pa(0,24)
    a('s_mov_b32 exec_hi, 0xff')
    for i in range(4): a(f'v_cvt_pk_bf16_f32 v{8+i}, v{2*i}, v{2*i+1}')
    a(f'buffer_store_dwordx4 v[8:11], v{FO}, s[8:11], s53 offen sc1\nbuffer_store_dwordx4 v[8:11], v{FO}, s[8:11], s52 offen{LS}')
    a('s_mov_b32 exec_hi, -1')
    a(f'{nx}:')
    stamp_end(a,prof)
    a(f's_add_u32 s16, s16, 1\ns_branch {top}\n{last}:')
    a('s_add_u32 s46, s13, 16')
    prof_out(a,prof)
```

```python
NAME='parallel_sum__memory_aug_recurrent_mem_tr__glu_gated_glu__prompt'
XN=0x0; RING=0x300000
MLOC=RING; MREM=RING+0x20000; PR=RING+0x40000; UR=RING+0x100000
FLAGS=0x600000; Y=0x700000; HB=0xC00000; PX=0x1200000; UM=0x1800000
KX=0x2C00000; QX=0x4400000; UX=0x5C00000; PROF=0xB000000
MRF=0xAC00000
WS_BYTES=268435456
F_SEG=FLAGS
F_XCC=FLAGS+0x4000
F_QK=FLAGS+0x8000
F_VU=FLAGS+0x9000
F_H=FLAGS+0xA000
F_Y=FLAGS+0xB000
F_TK=FLAGS+0xC000
class Asm:
    def __init__(s): s.L=[]; s.n=0; s.q=[]
    def __call__(s,x):
        for l in x.split('\n'):
            l=l.strip()
            if l: s.L.append(l if l.endswith(':') else ' '+l)
    def lab(s,p='L'): s.n+=1; return f'{p}_{s.n}'
    def text(s): return '\n'.join(s.L)+'\n'
    def lds(s,ins,tok=None):
        assert len(s.q)<15 or True
        s(ins); s.q.append(tok)
    def need(s,*toks):
        idx=max([i for i,t in enumerate(s.q) if t in toks],default=-1)
        if idx<0: return
        k=len(s.q)-1-idx
        s(f's_waitcnt lgkmcnt({min(k,15)})'); s.q=s.q[idx+1:]
    def ldsdrain(s): s('s_waitcnt lgkmcnt(0)'); s.q=[]
def srd(a,d,b,size):
    a(f's_mov_b32 s{d}, s{b}\ns_and_b32 s{d+1}, s{b+1}, 0xffff\ns_mov_b32 s{d+2}, {hex(size)}\ns_mov_b32 s{d+3}, 0x20000')
def kdesc(name,vgpr,accum,sgpr=102):
    return f'''.section .rodata,"a"
.p2align 6
.amdhsa_kernel {name}
  .amdhsa_next_free_vgpr {vgpr}
  .amdhsa_next_free_sgpr {sgpr}
  .amdhsa_accum_offset {accum}
  .amdhsa_group_segment_fixed_size 0
  .amdhsa_kernarg_size 112
  .amdhsa_user_sgpr_count 2
  .amdhsa_user_sgpr_kernarg_segment_ptr 1
  .amdhsa_system_sgpr_workgroup_id_x 1
  .amdhsa_float_denorm_mode_32 3
.end_amdhsa_kernel
'''
def khead(name):
    return f'.text\n.globl {name}\n.p2align 8\n.type {name},@function\n{name}:\n'
def interleave(a,main,side,every=1,start=0):
    si=0
    for i,m in enumerate(main):
        m() if callable(m) else a(m)
        if i>=start and (i-start)%every==every-1 and si<len(side):
            x=side[si]; si+=1
            x() if callable(x) else a(x)
    while si<len(side):
        x=side[si]; si+=1
        x() if callable(x) else a(x)
```

```python
from common import *
from chain import fbits
import math
NS=5; SL=24576
XB=40960
class VM:
    def __init__(s,a): s.a=a; s.q=[]
    def op(s,ins,tok=None): s.a(ins); s.q.append(tok)
    def need(s,*toks):
        idx=max([i for i,t in enumerate(s.q) if t in toks],default=-1)
        if idx<0: return
        k=len(s.q)-1-idx; assert k<=63
        s.a(f's_waitcnt vmcnt({k})'); s.q=s.q[idx+1:]
L16,XR,PD,GD,DD,UD,TE,TO,UE,UO,GT,DT,S1,S2,S3=232,235,236,236,236,239,240,241,242,243,240,240,244,245,246
LANE=20
FR0=192; NF=6
def spin(a,addr_s,cond,tmp=233):
    lp=a.lab('sp'); ok=a.lab('so')
    a(f'v_mov_b32 v{tmp}, 0\n{lp}:\nbuffer_load_dword v{tmp+1}, v{tmp}, s[8:11], {addr_s} offen sc1\ns_waitcnt vmcnt(0)\nv_readfirstlane_b32 s29, v{tmp+1}\ns_cmp_ge_u32 s29, {cond}\ns_cbranch_scc1 {ok}\ns_sleep 2\ns_sub_u32 s45, s45, 1\ns_cbranch_scc0 {lp}\ns_mov_b32 s45, 0\n{ok}:')
def signal(a,addr_s):
    e=a.lab('sg')
    a(f's_waitcnt vmcnt(0)\ns_barrier\ns_cmp_eq_u32 s14, 0\ns_cbranch_scc0 {e}\ns_mov_b64 exec, 1\nv_mov_b32 v233, 0\nv_mov_b32 v234, 1\nbuffer_atomic_add v234, v233, s[8:11], {addr_s} offen sc1\ns_mov_b64 exec, -1\n{e}:')
def run_stages(a,vm,stages):
    n=len(stages)
    def issue(s):
        for x in stages[s]['dma'](s%NS): vm.op(x,('st',s))
    for s in range(min(NS-1,n)): issue(s)
    flat=[(s,m) for s in range(n) for m in stages[s]['mm']]
    rd=[0]
    def prefetch(upto,cur):
        while rd[0]<len(flat) and rd[0]<upto and flat[rd[0]][0]<=cur+1:
            s,m=flat[rd[0]]; r=FR0+4*(rd[0]%NF)
            for P,x in enumerate(m['rd']): a.lds(x(r+2*P,(s%NS)*SL),('f',rd[0]))
            rd[0]+=1
    vm.need(('st',0))
    i=0
    for s in range(n):
        if s+1<n: vm.need(('st',s+1))
        a('s_barrier')
        if s+NS-1<n: pend=[lambda s=s:issue(s+NS-1)]
        else: pend=[]
        for j,m in enumerate(stages[s]['mm']):
            prefetch(i+NF-1,s)
            if 'pre' in m: m['pre']()
            a.need(('f',i)); a(m['mf'](FR0+4*(i%NF)))
            if j==1 and pend: pend.pop()()
            for x in m.get('post',[]): x() if callable(x) else a(x)
            i+=1
def trd(base,off):
    def f(d,so):
        o=off+so
        return f'ds_read_b64_tr_b16 v[{d}:{d+1}], v{base} offset:{o}' if o<65536 else f'ds_read_b64_tr_b16 v[{d}:{d+1}], v{base+8} offset:{o-65536}'
    return f
def dma(vreg,srd_,soff,lds): return f's_add_u32 m0, s19, {lds}\ns_add_u32 s29, {soff[0]}, {soff[1]}\nbuffer_load_dwordx4 v{vreg}, s[{srd_}:{srd_+3}], s29 offen lds'
def proj_stage(st,srd_,sb,acc,first):
    d=lambda slot:[dma(PD+i%3,srd_,(sb,st*64*12288+(i//3)*8*12288),slot*SL+i*1024) for i in range(6)]
    mm=[]
    for ks in range(4):
        for t in range(6):
            b=TE if t%2==0 else TO
            C='0' if first and ks==0 else f'v[{acc+16*t}:{acc+16*t+15}]'
            mm.append(dict(rd=[trd(b,(16*ks+4*P)*384+64*t) for P in range(2)],mf=lambda f,t=t,C=C,k=4*st+ks:f'v_mfma_f32_32x32x16_bf16 v[{acc+16*t}:{acc+16*t+15}], v[{f}:{f+3}], a[{4*k}:{4*k+3}], {C}'))
    return dict(dma=d,mm=mm)
def load_xn(a,vm):
    a(f's_lshl_b32 s28, s50, 2\ns_add_u32 s28, s28, s14\ns_mul_i32 s28, s28, {XB}')
    for k in range(40):
        vm.op(f'buffer_load_dwordx4 a[{4*k}:{4*k+3}], v{L16}, s[8:11], s28 offen offset:{(k%4)*1024}',('x',k))
        if k%4==3: a('s_add_u32 s28, s28, 4096')
def cvt_tile(acc,dst): return [f'v_cvt_pk_bf16_f32 v{dst+i}, v{acc+2*i}, v{acc+2*i+1}' for i in range(8)]
def task_QK(a):
    vm=VM(a); a('s_mul_i32 s52, s51, 384')
    load_xn(a,vm)
    st=[proj_stage(s,20,'s52',0,s==0) for s in range(10)]+[proj_stage(s,24,'s52',96,s==0) for s in range(10)]
    for s in range(10): st[s]['mm'][0]['pre']=lambda s=s:vm.need(('x',4*s+3))
    a(f's_lshl_b32 s53, s50, 2\ns_add_u32 s53, s53, s14\ns_lshl_b32 s53, s53, 5\ns_add_u32 s53, s53, s51\ns_mul_i32 s53, s53, 12288\ns_add_u32 s54, s53, {KX}\ns_add_u32 s53, s53, {QX}')
    def epi(acc,t,areg,sreg):
        o=cvt_tile(acc+16*t,216+8*(t%2))
        for c in range(2): o.append(lambda c=c:vm.op(f'buffer_store_dwordx4 v[{216+8*(t%2)+4*c}:{219+8*(t%2)+4*c}], v{areg}, s[8:11], {sreg} offen offset:{512*c} sc1'))
        o.append(f's_add_u32 {sreg}, {sreg}, 1024'); return o
    for t in range(6):
        e=epi(0,t,S1,'s53')
        for q in range(4): st[10+t]['mm'][4+4*q].setdefault('post',[]).extend(e[3*q:3*q+3])
    run_stages(a,vm,st)
    a('s_nop 15\ns_nop 3')
    for t in range(6):
        for x in epi(96,t,S2,'s54'): x() if callable(x) else a(x)
    a(f's_lshl_b32 s28, s50, 5\ns_add_u32 s28, s28, s51\ns_lshl_b32 s28, s28, 2\ns_add_u32 s28, s28, {F_QK}'); signal(a,'s28')
def task_VU(a):
    vm=VM(a); a('s_mul_i32 s52, s51, 384\ns_mul_i32 s55, s51, 245760')
    load_xn(a,vm)
    st=[proj_stage(s,28+4,'s52',0,s==0) for s in range(10)]
    for s in range(10): st[s]['mm'][0]['pre']=lambda s=s:vm.need(('x',4*s+3))
    a(f's_lshl_b32 s53, s50, 2\ns_add_u32 s53, s53, s14\ns_lshl_b32 s53, s53, 5\ns_add_u32 s53, s53, s51\ns_mul_i32 s53, s53, 40960\ns_add_u32 s53, s53, {UX}')
    def epi(acc):
        o=[]
        for ct in range(2):
            o+=cvt_tile(acc+16*ct,216+8*ct)
            for c in range(2): o.append(lambda c=c,ct=ct:vm.op(f'buffer_store_dwordx4 v[{216+8*ct+4*c}:{219+8*ct+4*c}], v{S1}, s[8:11], s53 offen offset:{2048*ct+1024*c} sc1'))
        o.append('s_add_u32 s53, s53, 4096'); return o
    for s in range(10):
        acc=(s%2)*32
        d=lambda slot,s=s:[dma(UD,36,('s55',s*128+i*8*1280),slot*SL+i*1024) for i in range(6)]
        mm=[]
        for k in range(12):
            for ct in range(2):
                C='0' if k==0 else f'v[{acc+16*ct}:{acc+16*ct+15}]'
                mm.append(dict(rd=[trd(UE if ct==0 else UO,(16*k+8*P)*128+64*ct) for P in range(2)],mf=lambda f,ct=ct,C=C,k=k,acc=acc:f'v_mfma_f32_32x32x16_bf16 v[{acc+16*ct}:{acc+16*ct+15}], v[{96+4*k}:{99+4*k}], v[{f}:{f+3}], {C}'))
        if s==0:
            def cv():
                a('s_nop 15')
                for t in range(6):
                    for x in cvt_tile(16*t,96+8*t): a(x)
                a('s_nop 1')
            mm[0]['pre']=cv
        else:
            e=epi(32-acc)
            for q in range(7): mm[6+2*q].setdefault('post',[]).extend(e[3*q:3*q+3])
        st.append(dict(dma=d,mm=mm))
    run_stages(a,vm,st)
    a('s_nop 15\ns_nop 3')
    for x in epi(32): x() if callable(x) else a(x)
    a(f's_lshl_b32 s28, s50, 5\ns_add_u32 s28, s28, s51\ns_lshl_b32 s28, s28, 2\ns_add_u32 s28, s28, {F_VU}'); signal(a,'s28')
def task_GLU(a):
    vm=VM(a); a('s_mul_i32 s52, s51, 192')
    load_xn(a,vm)
    st=[]
    for s in range(10):
        d=lambda slot,s=s:[dma(GD+i%3,40,('s52',s*64*3072+(i//3)*16*3072),slot*SL+i*1024) for i in range(6)]
        mm=[]
        for ks in range(4):
            for t in range(6):
                C='0' if s==0 and ks==0 else f'v[{16*t}:{16*t+15}]'
                mm.append(dict(rd=[trd(GT,(16*ks+4*P)*192+64*(t%3)+12288*(t//3)) for P in range(2)],mf=lambda f,t=t,C=C,k=4*s+ks:f'v_mfma_f32_32x32x16_bf16 v[{16*t}:{16*t+15}], v[{f}:{f+3}], a[{4*k}:{4*k+3}], {C}'))
        mm[0]['pre']=lambda s=s:vm.need(('x',4*s+3))
        st.append(dict(dma=d,mm=mm))
    run_stages(a,vm,st)
    a(f's_lshl_b32 s53, s50, 2\ns_add_u32 s53, s53, s14\ns_mul_i32 s53, s53, {96*1024}\ns_mul_i32 s28, s51, 6144\ns_add_u32 s53, s53, s28\ns_add_u32 s53, s53, {HB}\ns_mov_b32 s28, {hex(fbits(-math.log2(math.e)))}\ns_nop 15')
    for t in range(3):
        for i in range(16): a(f'v_mul_f32 v{16*t+i}, s28, v{16*t+i}')
        for i in range(16): a(f'v_exp_f32 v{16*t+i}, v{16*t+i}')
        for i in range(16): a(f'v_add_f32 v{16*t+i}, 1.0, v{16*t+i}')
        for i in range(16): a(f'v_rcp_f32 v{16*t+i}, v{16*t+i}')
        for i in range(16): a(f'v_mul_f32 v{16*t+i}, v{16*t+i}, v{48+16*t+i}')
        for x in cvt_tile(16*t,96+8*t): a(x)
        for c in range(2): a(f'buffer_store_dwordx4 v[{96+8*t+4*c}:{99+8*t+4*c}], v{L16}, s[8:11], s53 offen offset:{1024*c} sc1')
        a('s_add_u32 s53, s53, 2048')
    a(f's_lshl_b32 s28, s50, 7\ns_add_u32 s28, s28, {F_H}'); signal(a,'s28')
def task_DOWN(a):
    a(f's_lshl_b32 s28, s50, 7\ns_add_u32 s28, s28, {F_H}'); spin(a,'s28',16)
    vm=VM(a); a(f's_lshl_b32 s52, s51, 8\ns_lshl_b32 s53, s50, 2\ns_add_u32 s53, s53, s14\ns_mul_i32 s54, s53, {96*1024}\ns_add_u32 s54, s54, {HB}')
    def ldh(s):
        for k in range(6):
            vm.op(f'buffer_load_dwordx4 a[{24*(s%6)+4*k}:{24*(s%6)+4*k+3}], v{L16}, s[8:11], s54 offen offset:{(k%3)*1024}',('h',s))
            if k%3==2: a('s_add_u32 s54, s54, 3072')
    a(f's_mul_i32 s55, s53, {32*1280}\ns_add_u32 s55, s55, s52')
    for ct in range(4):
        for q in range(4): vm.op(f'buffer_load_dwordx2 v[{64+8*ct+2*q}:{65+8*ct+2*q}], v{XR}, s[56:59], s55 offen offset:{64*ct+16*q}','xr')
    for s in range(4): ldh(s)
    st=[]
    for s in range(16):
        d=lambda slot,s=s:[dma(DD,60,('s52',s*96*1280+i*4*1280),slot*SL+i*1024) for i in range(6)]
        mm=[]
        for k in range(6):
            for ct in range(4):
                C='0' if s==0 and k==0 else f'v[{16*ct}:{16*ct+15}]'
                mm.append(dict(rd=[trd(DT+ct,(16*k+8*P)*256) for P in range(2)],mf=lambda f,ct=ct,C=C,k=k,s=s:f'v_mfma_f32_32x32x16_bf16 v[{16*ct}:{16*ct+15}], v[{f}:{f+3}], a[{24*(s%6)+4*k}:{24*(s%6)+4*k+3}], {C}'))
        mm[0]['pre']=lambda s=s:vm.need(('h',s))
        if s+4<16: mm[8]['post']=[lambda s=s:ldh(s+4)]
        st.append(dict(dma=d,mm=mm))
    run_stages(a,vm,st)
    a(f's_mul_i32 s53, s53, {20*4096}\ns_lshl_b32 s28, s51, 14\ns_add_u32 s53, s53, s28\ns_add_u32 s53, s53, {Y}\ns_nop 15')
    for ct in range(4):
        for q in range(4):
            x=64+8*ct+2*q; b=16*ct+4*q
            a(f'v_lshlrev_b32 v96, 16, v{x}\nv_and_b32 v97, 0xffff0000, v{x}\nv_lshlrev_b32 v98, 16, v{x+1}\nv_and_b32 v99, 0xffff0000, v{x+1}\nv_pk_add_f32 v[{b}:{b+1}], v[{b}:{b+1}], v[96:97]\nv_pk_add_f32 v[{b+2}:{b+3}], v[{b+2}:{b+3}], v[98:99]\nbuffer_store_dwordx4 v[{b}:{b+3}], v{L16}, s[8:11], s53 offen offset:{1024*q} sc1')
        a('s_add_u32 s53, s53, 4096')
    a(f's_mul_i32 s28, s50, 5\ns_add_u32 s28, s28, s51\ns_lshl_b32 s28, s28, 2\ns_add_u32 s28, s28, {F_Y}'); signal(a,'s28')
def task_FIN(a):
    a(f's_lshr_b32 s28, s50, 2\ns_mul_i32 s28, s28, 5\ns_lshr_b32 s52, s51, 2\ns_add_u32 s28, s28, s52\ns_lshl_b32 s28, s28, 2\ns_add_u32 s28, s28, {F_Y}'); spin(a,'s28',1)
    a(f's_lshl_b32 s52, s50, 5\ns_lshl_b32 s28, s14, 3\ns_add_u32 s52, s52, s28')
    a(f's_mul_i32 s53, s50, 20\ns_add_u32 s53, s53, s51\ns_lshl_b32 s53, s53, 12\ns_lshl_b32 s28, s14, 10\ns_add_u32 s53, s53, s28\ns_add_u32 s53, s53, {Y}\nbuffer_load_dwordx4 v[180:183], v{L16}, s[8:11], s53 offen')
    a(f's_lshl_b32 s28, s50, 7\ns_add_u32 s28, s28, {F_SEG}'); spin(a,'s28',32)
    a(f's_mul_i32 s53, s52, 40960\ns_lshl_b32 s28, s51, 11\ns_add_u32 s53, s53, s28\ns_add_u32 s53, s53, {UX}\ns_mul_i32 s54, s52, 2560\ns_add_u32 s54, s54, {PX}\ns_mul_i32 s55, s52, 10240\ns_lshl_b32 s28, s51, 9\ns_add_u32 s55, s55, s28\ns_add_u32 s55, s55, {UM}')
    for h in range(8):
        for c in range(2):
            a(f'buffer_load_dwordx4 v[{16+16*h+8*c}:{19+16*h+8*c}], v{S1}, s[8:11], s53 offen offset:{1024*c}\nbuffer_load_dwordx4 v[{20+16*h+8*c}:{23+16*h+8*c}], v{S1}, s[8:11], s54 offen offset:{1024*c}')
        if h%2==0: a(f'buffer_load_dwordx4 v[{144+4*h}:{147+4*h}], v{S2}, s[8:11], s55 offen\nbuffer_load_dwordx4 v[{148+4*h}:{151+4*h}], v{S3}, s[8:11], s54 offen offset:2048\ns_add_u32 s55, s55, 20480')
        a('s_add_u32 s53, s53, 40960\ns_add_u32 s54, s54, 2560')
    left=40; first=True
    for h in range(8):
        seq=[(16+16*h,20+16*h),(24+16*h,28+16*h)]+([(144+4*h,148+4*h)] if h%2==0 else [])
        for (A,B) in seq:
            left-=2; a(f's_waitcnt vmcnt({left})\nv_mfma_f32_32x32x16_bf16 v[0:15], v[{A}:{A+3}], v[{B}:{B+3}], {"0" if first else "v[0:15]"}'); first=False
    a(f's_lshl_b32 s28, s14, 12\nv_add_u32 v184, s28, v{L16}\ns_lshl_b32 s28, s14, 10\nv_add_u32 v185, s28, v{L16}\ns_nop 15')
    for q in range(4): a(f'ds_write_b128 v184, v[{4*q}:{4*q+3}] offset:{1024*q}')
    a('s_waitcnt lgkmcnt(0)\ns_barrier')
    for w in range(4): a(f'ds_read_b128 v[{16+4*w}:{19+4*w}], v185 offset:{4096*w}')
    a(f's_mul_i32 s53, s50, {32*1280}\ns_lshl_b32 s28, s51, 6\ns_add_u32 s53, s53, s28\ns_lshl_b32 s28, s14, 4\ns_add_u32 s53, s53, s28\ns_waitcnt lgkmcnt(0)')
    for w in range(4): a(f'v_pk_add_f32 v[180:181], v[180:181], v[{16+4*w}:{17+4*w}]\nv_pk_add_f32 v[182:183], v[182:183], v[{18+4*w}:{19+4*w}]')
    a('v_cvt_pk_bf16_f32 v180, v180, v181\nv_cvt_pk_bf16_f32 v181, v182, v183\nbuffer_store_dwordx2 v[180:181], v235, s[4:7], s53 offen\ns_barrier')
def gen_worker(a,first=0,last=1360+1280,nw=192):
    a('s_load_dwordx8 s[64:71], s[0:1], 16\ns_load_dwordx4 s[72:75], s[0:1], 64\ns_load_dwordx4 s[76:79], s[0:1], 80\ns_load_dwordx2 s[80:81], s[0:1], 0\ns_waitcnt lgkmcnt(0)')
    srd(a,20,64,7864320); srd(a,24,66,7864320); srd(a,32,68,7864320); srd(a,36,70,7864320)
    a('s_cmp_lt_u32 s14, 2\ns_cselect_b32 s72, s72, s74\ns_cselect_b32 s73, s73, s75'); srd(a,40,72,640*3072); srd(a,60,76,1536*1280); srd(a,4,78,2048*1280); srd(a,56,80,2048*1280)
    a(f'''s_mov_b32 s45, 2000000
    s_mul_i32 s19, s14, 6144
    v_and_b32 v{LANE}, 63, v0
    v_lshlrev_b32 v{L16}, 4, v{LANE}
    v_and_b32 v1, 31, v{LANE}
    v_lshrrev_b32 v2, 5, v{LANE}
    v_bfe_u32 v3, v{LANE}, 2, 2
    v_bfe_u32 v4, v{LANE}, 4, 1
    v_and_b32 v5, 3, v{LANE}
    v_lshlrev_b32 v5, 3, v5
    v_lshl_add_u32 v5, v4, 5, v5
    v_bfe_u32 v6, v{LANE}, 3, 1
    v_lshlrev_b32 v6, 6, v6
    v_lshl_add_u32 v7, v2, 3, v3
    v_mul_u32_u24 v8, 384, v7
    v_add_u32 v8, v8, v5
    v_add_u32 v30, v8, v6
    v_sub_u32 v31, v8, v6
    v_mul_u32_u24 v8, 192, v7
    v_add_u32 v32, v8, v5
    v_lshl_add_u32 v7, v2, 2, v3
    v_lshl_add_u32 v8, v7, 7, v5
    v_add_u32 v33, v8, v6
    v_sub_u32 v34, v8, v6
    v_lshl_add_u32 v8, v7, 8, v5''')
    for ct in range(4): a(f'v_xor_b32 v9, {ct}, v3\nv_lshl_add_u32 v{40+ct}, v9, 6, v8')
    a(f'''v_lshlrev_b32 v8, 5, v1
    v_lshl_add_u32 v52, v2, 4, v8
    v_mul_u32_u24 v8, 10240, v2
    v_lshl_add_u32 v53, v1, 4, v8
    v_mul_u32_u24 v8, 2560, v2
    v_lshl_add_u32 v54, v1, 4, v8
    v_mul_u32_u24 v8, 1280, v1
    v_lshl_add_u32 v55, v2, 3, v8
    v_lshrrev_b32 v8, 4, v1
    v_mul_u32_u24 v9, 6144, v8
    v_and_b32 v10, 15, v1
    v_lshl_add_u32 v9, v10, 4, v9
    v_lshl_add_u32 v56, v2, 8, v9
    v_bfe_u32 v9, v1, 3, 1
    v_mul_u32_u24 v9, 6144, v9
    v_lshl_add_u32 v9, v8, 7, v9
    v_and_b32 v10, 7, v1
    v_lshl_add_u32 v9, v10, 4, v9
    v_lshl_add_u32 v57, v2, 8, v9''')
    for i in range(3):
        a(f'''v_add_u32 v8, {64*i}, v{LANE}
        v_mul_u32_u24 v9, 0xaaab, v8
        v_lshrrev_b32 v11, 19, v9
        v_lshrrev_b32 v9, 20, v9
        v_mul_u32_u24 v10, 24, v9
        v_sub_u32 v10, v8, v10
        v_bfe_u32 v12, v9, 1, 1
        v_lshlrev_b32 v12, 2, v12
        v_xor_b32 v10, v10, v12
        s_lshl_b32 s28, s14, 4
        v_add_u32 v9, s28, v9
        v_mul_u32_u24 v9, 12288, v9
        v_lshl_add_u32 v{44+i}, v10, 4, v9
        v_mul_u32_u24 v10, 12, v11
        v_sub_u32 v10, v8, v10
        s_and_b32 s28, s14, 1
        s_lshl_b32 s28, s28, 5
        v_add_u32 v11, s28, v11
        v_mul_u32_u24 v11, 3072, v11
        v_lshl_add_u32 v{48+i}, v10, 4, v11''')
    a(f'''v_lshrrev_b32 v8, 3, v{LANE}
    v_and_b32 v9, 7, v{LANE}
    v_bfe_u32 v10, v8, 1, 1
    v_lshlrev_b32 v10, 2, v10
    v_xor_b32 v9, v9, v10
    s_mul_i32 s28, s14, 48
    v_add_u32 v8, s28, v8
    v_mul_u32_u24 v8, 1280, v8
    v_lshl_add_u32 v35, v9, 4, v8
    v_lshrrev_b32 v8, 4, v{LANE}
    v_and_b32 v9, 15, v{LANE}
    v_lshlrev_b32 v10, 2, v8
    v_xor_b32 v9, v9, v10
    s_mul_i32 s28, s14, 24
    v_add_u32 v8, s28, v8
    v_mul_u32_u24 v8, 1280, v8
    v_lshl_add_u32 v36, v9, 4, v8
    ''')
    for r in range(30,58): a(f'v_accvgpr_write_b32 a{170+r}, v{r}')
    def get(*pairs):
        for d,r in pairs: a(f'v_accvgpr_read_b32 v{d}, a{170+r}')
        for d,r in pairs:
            if 240<=d<244: a(f'v_add_u32 v{d+8}, 0x10000, v{d}')
    a(f'''s_add_u32 s18, s17, {first}
    wk_loop:
    s_cmp_ge_u32 s18, {last}
    s_cbranch_scc1 wk_done
    s_cmp_ge_u32 s18, 1360
    s_cbranch_scc0 wk_n4
    s_sub_u32 s28, s18, 1360
    s_mul_i32 s50, s28, 0xccd
    s_lshr_b32 s50, s50, 16
    s_mul_i32 s51, s50, 20
    s_sub_u32 s51, s28, s51''')
    get((XR,55),(S1,52),(S2,53),(S3,54)); task_FIN(a)
    a(f'''wk_next:
    s_add_u32 s18, s18, {nw}
    s_branch wk_loop
    wk_done:
    s_endpgm
    wk_n4:
    s_cmp_ge_u32 s18, 1280
    s_cbranch_scc0 wk_n3
    s_sub_u32 s28, s18, 1280
    s_mul_i32 s50, s28, 0x3334
    s_lshr_b32 s50, s50, 16
    s_mul_i32 s51, s50, 5
    s_sub_u32 s51, s28, s51''')
    get((XR,55),(DD,36),*[(DT+i,40+i) for i in range(4)]); task_DOWN(a)
    a('''s_branch wk_next
    wk_n3:
    s_cmp_ge_u32 s18, 1024
    s_cbranch_scc0 wk_n2
    s_sub_u32 s28, s18, 1024
    s_lshr_b32 s50, s28, 4
    s_and_b32 s51, s28, 15''')
    get((GT,32),*[(GD+i,48+i) for i in range(3)]); task_GLU(a)
    a('''s_branch wk_next
    wk_n2:
    s_lshr_b32 s50, s18, 6
    s_bfe_u32 s51, s18, 0x50001''')
    get((TE,30),(TO,31),(UE,33),(UO,34),(UD,35),(S1,56),(S2,57),*[(PD+i,44+i) for i in range(3)])
    a('s_bitcmp1_b32 s18, 0\ns_cbranch_scc1 wk_vu'); task_QK(a)
    a('s_branch wk_next\nwk_vu:'); get((S1,52)); task_VU(a)
    a('s_branch wk_next')
```

```python
from common import *
import chain, worker
def gen_init(a):
    a('''s_cmp_ge_u32 s2, 256
    s_cbranch_scc1 init_end
    s_load_dwordx4 s[4:7], s[0:1], 0
    s_load_dwordx2 s[12:13], s[0:1], 104
    s_waitcnt lgkmcnt(0)''')
    srd(a,8,12,WS_BYTES); srd(a,16,4,2048*1280); srd(a,20,6,10240)
    a('''v_and_b32 v2, 31, v0
    v_lshrrev_b32 v3, 5, v0
    s_lshl_b32 s3, s2, 3
    v_add_u32 v3, s3, v3
    v_mul_u32_u24 v4, 1280, v3
    v_lshl_add_u32 v4, v2, 3, v4''')
    for i in range(5): a(f'buffer_load_dwordx2 v[{10+2*i}:{11+2*i}], v4, s[16:19], 0 offen offset:{256*i}')
    a(f'''s_mul_i32 s3, s2, 12288
    s_add_u32 s3, s3, {RING}
    v_lshlrev_b32 v5, 4, v0
    v_mov_b32 v40, -1
    v_mov_b32 v41, -1
    v_mov_b32 v42, -1
    v_mov_b32 v43, -1''')
    for i in range(3):
        a(f'''s_sub_u32 s24, s3, {RING-4096*i}
        v_add_u32 v6, s24, v5
        v_and_b32 v7, 0xfffcc000, v6
        v_and_b32 v7, 0xfffcffff, v6
        v_cmp_le_u32 vcc, 0x4000, v7
        s_and_saveexec_b64 s[26:27], vcc
        s_cbranch_execz init_p{i}
        v_add_u32 v6, {RING}, v6
        buffer_store_dwordx4 v[40:43], v6, s[8:11], 0 offen
        init_p{i}:
        s_mov_b64 exec, s[26:27]''')
    a(f'''s_cmp_ge_u32 s2, 8
    s_cbranch_scc1 init_ln
    v_mov_b32 v44, 0
    v_mov_b32 v45, 0
    v_mov_b32 v46, 0
    v_mov_b32 v47, 0
    s_cmp_ge_u32 s2, 4
    s_cbranch_scc1 init_fl
    s_lshl_b32 s24, s2, 16
    s_add_u32 s24, s24, {MLOC}''')
    for i in range(3):
        a(f'''v_add_u32 v6, {256*i}, v0
        v_min_u32 v6, 639, v6
        v_and_b32 v7, 7, v6
        v_lshrrev_b32 v8, 3, v6
        v_mul_u32_u24 v7, 1280, v7
        v_lshl_add_u32 v7, v8, 4, v7
        v_lshlrev_b32 v6, 4, v6
        s_cmp_ge_u32 s2, 2
        s_cbranch_scc1 init_z{i}
        buffer_load_dwordx4 v[44:47], v7, s[20:23], 0 offen
        s_waitcnt vmcnt(0)
        init_z{i}:
        buffer_store_dwordx4 v[44:47], v6, s[8:11], s24 offen
        s_nop 1''')
    a(f'''s_branch init_ln
    init_fl:
    s_sub_u32 s24, s2, 4
    s_lshl_b32 s24, s24, 14
    s_add_u32 s24, s24, {FLAGS}''')
    for i in range(4): a(f'buffer_store_dwordx4 v[44:47], v5, s[8:11], s24 offen\ns_add_u32 s24, s24, 4096')
    a('init_ln:\ns_waitcnt vmcnt(0)')
    for i in range(10): a(f'v_lshlrev_b32 v{20+2*i}, 16, v{10+i}\nv_and_b32 v{21+2*i}, 0xffff0000, v{10+i}')
    def red(r):
        for sh in (1,2,4,8): a(f's_nop 1\nv_add_f32_dpp v{r}, v{r}, v{r} row_ror:{sh} row_mask:0xf bank_mask:0xf')
        a(f'v_mov_b32 v9, v{r}\ns_nop 1\nv_permlane16_swap_b32 v{r}, v9\ns_nop 1\nv_add_f32 v{r}, v{r}, v9')
    def rnd(r): a(f'v_cvt_pk_bf16_f32 v{r}, v{r}, v{r}\nv_and_b32 v{r}, 0xffff0000, v{r}')
    a('v_add_f32 v6, v20, v21')
    for i in range(2,20): a(f'v_add_f32 v6, v6, v{20+i}')
    red(6); a(f'v_mul_f32 v6, {hex(chain.fbits(1/640))}, v6')
    a('v_sub_f32 v8, v20, v6\nv_mul_f32 v7, v8, v8')
    for i in range(1,20): a(f'v_sub_f32 v8, v{20+i}, v6\nv_fmac_f32 v7, v8, v8')
    red(7); a(f'v_mul_f32 v7, {hex(chain.fbits(1/640))}, v7')
    rnd(6); rnd(7); a(f'v_add_f32 v7, {hex(chain.fbits(1e-5))}, v7'); rnd(7); a('v_sqrt_f32 v7, v7\ns_nop 0'); rnd(7); a('v_rcp_f32 v7, v7')
    for i in range(10):
        a(f'v_sub_f32 v{20+2*i}, v{20+2*i}, v6\nv_sub_f32 v{21+2*i}, v{21+2*i}, v6\nv_cvt_pk_bf16_f32 v8, v{20+2*i}, v{21+2*i}\nv_lshlrev_b32 v{20+2*i}, 16, v8\nv_and_b32 v{21+2*i}, 0xffff0000, v8\nv_mul_f32 v{20+2*i}, v{20+2*i}, v7\nv_mul_f32 v{21+2*i}, v{21+2*i}, v7\nv_cvt_pk_bf16_f32 v{10+i}, v{20+2*i}, v{21+2*i}')
    a('''v_lshrrev_b32 v4, 5, v3
    v_mul_u32_u24 v4, 40960, v4
    v_and_b32 v5, 31, v3
    v_lshl_add_u32 v4, v5, 4, v4
    v_lshrrev_b32 v5, 2, v2
    v_lshl_add_u32 v4, v5, 10, v4
    v_bfe_u32 v5, v2, 1, 1
    v_lshl_add_u32 v4, v5, 9, v4
    v_and_b32 v5, 1, v2
    v_lshl_add_u32 v4, v5, 3, v4''')
    for i in range(5): a(f's_mov_b32 s3, {8192*i}\nbuffer_store_dwordx2 v[{10+2*i}:{11+2*i}], v4, s[8:11], s3 offen')
    a('init_end:\ns_endpgm')
def gen_dispatch(a,force_slow=False):
    a(f'''s_cmp_ge_u32 s2, 256
    s_cbranch_scc1 main_end0
    s_load_dwordx2 s[4:5], s[0:1], 104
    s_memrealtime s[92:93]
    s_getreg_b32 s6, hwreg(HW_REG_XCC_ID, 0, 3)
    v_lshrrev_b32 v1, 6, v0
    s_nop 0
    v_readfirstlane_b32 s14, v1
    s_waitcnt lgkmcnt(0)''')
    srd(a,8,4,WS_BYTES)
    a(f'''s_cmp_eq_u32 s14, 0
    s_cbranch_scc0 cen_wait
    s_lshl_b32 s28, s6, 7
    s_add_u32 s28, s28, {F_XCC}
    s_mov_b64 exec, 1
    v_mov_b32 v2, 0
    v_mov_b32 v3, 1
    buffer_atomic_add v3, v2, s[8:11], s28 offen sc0 sc1
    s_waitcnt vmcnt(0)
    v_readfirstlane_b32 s7, v3
    s_mov_b64 exec, -1
    v_and_b32 v2, 7, v0
    v_lshlrev_b32 v2, 7, v2
    s_mov_b32 s29, {F_XCC}
    s_mov_b32 s45, 400000
    cen_poll:
    buffer_load_dword v3, v2, s[8:11], s29 offen sc1
    s_waitcnt vmcnt(0)''')
    for i in range(8): a(f'v_readlane_b32 s{60+i}, v3, {i}')
    a('s_add_u32 s28, s60, s61')
    for i in range(2,8): a(f's_add_u32 s28, s28, s{60+i}')
    a('''s_cmp_ge_u32 s28, 256
    s_cbranch_scc1 cen_done
    s_sub_u32 s45, s45, 1
    s_cbranch_scc0 cen_poll
    cen_done:
    s_mov_b32 s28, 0''')
    for i in range(7): a(f's_cmp_gt_u32 s6, {i}\ns_cselect_b32 s29, s{60+i}, 0\ns_add_u32 s28, s28, s29')
    a(f'''s_add_u32 s28, s28, s7
    s_min_u32 s29, s60, s61
    s_cmp_ge_u32 s29, {1000 if force_slow else 32}
    s_cbranch_scc1 cen_fast
    s_or_b32 s28, s28, 0x1000
    s_branch cen_pub
    cen_fast:
    s_cmp_lt_u32 s6, 2
    s_cbranch_scc0 cen_pub2
    s_cmp_lt_u32 s7, 32
    s_cbranch_scc0 cen_ex
    s_lshl_b32 s28, s6, 5
    s_add_u32 s28, s28, s7
    s_branch cen_pub
    cen_ex:
    s_cmp_eq_u32 s6, 0
    s_cselect_b32 s29, 32, 0
    s_add_u32 s28, s28, s29
    cen_pub2:
    cen_pub:
    v_mov_b32 v2, 0
    v_mov_b32 v3, s28
    ds_write_b32 v2, v3
    s_waitcnt lgkmcnt(0)
    cen_wait:
    s_barrier
    v_mov_b32 v2, 0
    ds_read_b32 v3, v2
    s_waitcnt lgkmcnt(0)
    v_readfirstlane_b32 s28, v3
    s_barrier
    s_and_b32 s17, s28, 0xfff
    s_memrealtime s[94:95]
    s_cmp_ge_u32 s17, 64
    s_cbranch_scc1 role_worker
    s_lshr_b32 s12, s17, 5
    s_and_b32 s13, s17, 15
    s_lshl_b32 s15, s12, 4
    s_add_u32 s15, s15, s13
    s_bitcmp1_b32 s17, 4
    s_cbranch_scc1 role_V
    s_load_dwordx4 s[4:7], s[0:1], 16
    s_waitcnt lgkmcnt(0)''')
    srd(a,20,4,7864320); srd(a,24,6,7864320)
    a('s_bitcmp1_b32 s28, 12\ns_cbranch_scc1 role_S_slow\ns_branch role_S_fast\nrole_V:\ns_load_dwordx4 s[4:7], s[0:1], 32\ns_waitcnt lgkmcnt(0)')
    srd(a,20,4,7864320); srd(a,24,6,7864320)
    a('s_bitcmp1_b32 s28, 12\ns_cbranch_scc1 role_V_slow\ns_branch role_V_fast\nmain_end0:\ns_endpgm')
def gen_main(a,prof,overlap,worker,force_slow=False):
    gen_dispatch(a,force_slow)
    a('role_S_fast:'); chain.gen_S(a,0,prof,overlap); a('s_endpgm')
    a('role_V_fast:'); chain.gen_V(a,0,prof,overlap); a('s_endpgm')
    a('role_S_slow:\ns_branch role_S_slow2\nrole_V_slow:\ns_branch role_V_slow2')
    a('role_worker:\ns_sub_u32 s17, s17, 64'); worker(a); a('s_endpgm')
    a('role_S_slow2:'); chain.gen_S(a,1,prof,overlap); a('s_endpgm')
    a('role_V_slow2:'); chain.gen_V(a,1,prof,overlap); a('s_endpgm')
def build_chain_test(prof=True,force_slow=False):
    a=Asm(); gen_init(a); t0=a.text()
    b=Asm(); gen_main(b,prof,False,lambda a:None,force_slow); t1=b.text()
    return ('; @launch kernel=init_kernel grid=(256,1,1) block=(256,1,1) lds=0\n; @launch kernel=main_kernel grid=(256,1,1) block=(256,1,1) lds=163840\n'
      '.amdgcn_target "amdgcn-amd-amdhsa--gfx950"\n'+khead('init_kernel')+t0+khead('main_kernel')+t1+kdesc('init_kernel',48,48)+kdesc('main_kernel',512,256))
def build_full(prof=False,force_slow=False):
    a=Asm(); gen_init(a); t0=a.text()
    b=Asm(); gen_main(b,prof,True,worker.gen_worker,force_slow); t1=b.text()
    return ('; @launch kernel=init_kernel grid=(256,1,1) block=(256,1,1) lds=0\n; @launch kernel=main_kernel grid=(256,1,1) block=(256,1,1) lds=163840\n'
      '.amdgcn_target "amdgcn-amd-amdhsa--gfx950"\n'+khead('init_kernel')+t0+khead('main_kernel')+t1+kdesc('init_kernel',48,48)+kdesc('main_kernel',512,256))
if __name__=='__main__':
    import sys
    for o in sys.argv[1:]:
        chain.OPT=set(o.split('+'))
        for x in chain.OPT:
            if x.startswith('ux'): chain.UX0,chain.UXS=int(x[2]),int(x[3])
        if 'full' in o:
            open(f'f_{o}.s','w').write(build_full('prof' in o,'slow' in o)); continue
        t=build_chain_test(True)
        if 'solo' in o:
            L=[];inl=False
            for l in t.split('\n'):
                if l.startswith('Sstep') or l.startswith('Vstep'): inl=True
                if 's_endpgm' in l: inl=False
                if inl and l.strip().startswith('buffer_') and 'v1, v0' not in l: continue
                if inl: l=l.replace('s_cbranch_vccz ok','s_branch ok')
                L.append(l)
            t='\n'.join(L)
        open(f'ch_{o}_p.s','w').write(t)
        open(f'ch_{o}_n.s','w').write(build_chain_test(False))
```

```python
from common import *
import math
SPIN=200000
OPT=set()
UX0=2; UXS=3; CPS=[9,11,13,16,20,24,34,40,46]; EFD=0; SLP=0
NSTEP=64
def wreg(n,vbase):
    return f'a[{8*n}:{8*n+7}]' if n<32 else f'v[{vbase+8*(n-32)}:{vbase+8*(n-32)+7}]'
def wreg2(n,vbase,o):
    return f'a[{8*n+o}:{8*n+o+1}]' if n<32 else f'v[{vbase+8*(n-32)+o}:{vbase+8*(n-32)+o+1}]'
TM=lambda:'s_memtime' if 'cyc' in OPT else 's_memrealtime'
def stamp(a,prof,i):
    if prof: a(f'{TM()} s[{62+2*a.ns}:{63+2*a.ns}]'); a.ns+=1
def stamp_end(a,prof):
    if not prof: return
    sk=a.lab('se')
    a(f'{TM()} s[{62+2*a.ns}:{63+2*a.ns}]\ns_and_b32 s2, s16, 7\ns_cmp_eq_u32 s2, 5\ns_cbranch_scc0 {sk}\ns_waitcnt lgkmcnt(0)')
    a(f's_lshl_b32 s28, s12, 5\ns_add_u32 s28, s28, s13\ns_add_u32 s28, s28, {a.pv}\ns_lshl_b32 s28, s28, 2\ns_add_u32 s28, s28, s14\ns_lshl_b32 s28, s28, 9\ns_lshr_b32 s2, s16, 3\ns_lshl_b32 s2, s2, 6\ns_add_u32 s28, s28, s2\ns_add_u32 s28, s28, {PROF+0x20000}\ns_mov_b64 exec, 1\nv_mov_b32 v0, 0')
    for i in range(a.ns+1): a(f'v_mov_b32 v1, s{62+2*i}\nbuffer_store_dword v1, v0, s[8:11], s28 offen offset:{4*i}')
    a(f's_mov_b64 exec, -1\n{sk}:')
def check(a,regs,tmp,retry):
    r=list(regs); t=tmp; outs=[]
    while len(r)>1:
        if len(r)>=3:
            a(f'v_max3_u32 v{t}, v{r[0]}, v{r[1]}, v{r[2]}'); r=r[3:]+[t]
        else:
            a(f'v_max_u32 v{t}, v{r[0]}, v{r[1]}'); r=[t]
        t+=1
    ok=a.lab('ok')
    a(f'v_cmp_eq_u32 vcc, -1, v{r[0]}\ns_cbranch_vccz {ok}\ns_sub_u32 s45, s45, 1\ns_cbranch_scc0 {retry}\ns_mov_b32 s45, 0\n{ok}:')
RF=lambda:' sc1'
def gather(a,RAW,RR,G01,G2,L16,prof,isV=False):
    l1=a.lab('pl'); l2=a.lab('pr'); go=a.lab('g'); skip=a.lab('gs')
    nc=3 if isV else 2; nd=4*nc+2; U=12 if isV else 16; st=3072 if isV else 4096
    def ld(R,s1,s2,fl=' sc1'):
        rem=(s1=='s31')
        for c in range(nc):
            so,of=(s1,c*st) if c*st<4096 else (s2,c*st-4096)
            if rem and isV and c==2: a(f'buffer_load_dwordx4 v[{R+8}:{R+11}], v6, s[8:11], 0 offen{fl}')
            else: a(f'buffer_load_dwordx4 v[{R+4*c}:{R+4*c+3}], v{G01}, s[8:11], {so} offen offset:{of}{fl}')
        a(f'buffer_load_dwordx2 v[{R+4*nc}:{R+4*nc+1}], v{G2}, s[8:11], {"s17" if rem else s1} offen{fl}')
    if isV: a(f'v_add_u32 v6, 6144, v{G01}\nv_mov_b32 v7, s31\nv_mov_b32 v8, s17\nv_cmp_gt_u32 vcc, 8192, v6\ns_nop 1\nv_cndmask_b32 v7, v8, v7, vcc\nv_add_u32 v6, v6, v7')
    if isV:
        ns=a.ns; a(f's_cmp_eq_u32 s14, 0\ns_cbranch_scc1 {skip}')
    if 'gate' in OPT or 'ef' in OPT:
        l0=a.lab('ps'); ok=a.lab('ok')
        a(f'v_bfe_u32 v4, v{L16}, 4, 4\nv_lshlrev_b32 v4, 2, v4\ns_mov_b64 exec, 0xffff\n{l0}:\nbuffer_load_dword v5, v4, s[8:11], s46 offen sc1\ns_waitcnt vmcnt(0)\nv_cmp_gt_u32 vcc, s16, v5\ns_cbranch_vccz {ok}\ns_sub_u32 s45, s45, 1\ns_cbranch_scc0 {l0}\ns_mov_b32 s45, 0\n{ok}:\ns_mov_b64 exec, -1')
    if 'ef' in OPT:
        stamp(a,prof,0)
        a(f'{l1}:'); ld(RAW,'s30','s34'); ld(RR,'s31','s35',RF()); a(f's_waitcnt vmcnt({nc+1})')
        check(a,[RAW+4*c for c in range(nc+1)],0,l1)
    else:
        if 'dbl' in OPT and not isV:
            lb=a.lab('lb'); okA=a.lab('oa'); okB=a.lab('ob'); ALT=4
            def chk2(R,okl):
                a(f'v_max3_u32 v0, v{R}, v{R+4}, v{R+8}\nv_cmp_eq_u32 vcc, -1, v0\ns_cbranch_vccz {okl}')
            ld(RAW,'s30','s34')
            a(f'{l1}:'); ld(ALT,'s30','s34'); a('s_waitcnt vmcnt(3)'); chk2(RAW,okA)
            ld(RAW,'s30','s34'); a('s_waitcnt vmcnt(3)'); chk2(ALT,okB)
            a(f's_sub_u32 s45, s45, 1\ns_cbranch_scc0 {l1}\ns_mov_b32 s45, 0\n{okB}:')
            ns=a.ns; stamp(a,prof,0); a.ns=ns
            ld(RR,'s31','s35')
            for i in range(nd): a(f'v_lshlrev_b32 v{U+2*i}, 16, v{ALT+i}\nv_and_b32 v{U+1+2*i}, 0xffff0000, v{ALT+i}')
            a(f's_branch {go}\n{okA}:')
        else:
            a(f'{l1}:'); ld(RAW,'s30','s34'); a('s_waitcnt vmcnt(0)')
            check(a,[RAW+4*c for c in range(nc+1)],0,l1)
        stamp(a,prof,0)
        ld(RR,'s31','s35',RF())
    for i in range(nd): a(f'v_lshlrev_b32 v{U+2*i}, 16, v{RAW+i}\nv_and_b32 v{U+1+2*i}, 0xffff0000, v{RAW+i}')
    a(f's_branch {go}\n{l2}:'); ld(RR,'s31','s35'); a(f'{go}:\ns_waitcnt vmcnt(0)')
    check(a,[RR+4*c for c in range(nc+1)],0,l2)
    stamp(a,prof,1)
    dot=lambda i:a(f'v_dot2_f32_bf16 v{U+2*i}, v{RR+i}, s42, v{U+2*i}\nv_dot2_f32_bf16 v{U+1+2*i}, v{RR+i}, s43, v{U+1+2*i}')
    cvt=lambda i:a(f'v_cvt_pk_bf16_f32 v{RAW+i}, v{U+2*i}, v{U+1+2*i}')
    for c in range(nc):
        for i in range(4*c,4*c+4): dot(i)
        for i in range(4*c,4*c+4): cvt(i)
        a(f'ds_write_b128 v{G01}, v[{RAW+4*c}:{RAW+4*c+3}] offset:{c*st}')
    dot(nd-2); dot(nd-1); a('s_nop 0'); cvt(nd-2); a('s_nop 0'); cvt(nd-1)
    a(f'ds_write_b64 v{G2}, v[{RAW+nd-2}:{RAW+nd-1}]')
    a(f'{skip}:\ns_waitcnt lgkmcnt(0)\ns_barrier'); a.q=[]
    stamp(a,prof,2)
def step_offsets(a):
    a(f's_and_b32 s28, s16, 3\ns_lshl_b32 s29, s28, 1\ns_add_u32 s29, s29, s18\ns_lshr_b32 s17, s19, s29\ns_lshl_b32 s29, s29, 14\ns_add_u32 s29, s29, {MRF}\ns_and_b32 s31, s17, 1\ns_lshl_b32 s31, s31, 13\ns_add_u32 s31, s31, s29\ns_and_b32 s17, s17, 2\ns_lshl_b32 s17, s17, 12\ns_add_u32 s17, s17, s29\ns_add_u32 s17, s17, 8192\ns_lshl_b32 s28, s28, 14\ns_add_u32 s30, s28, s36\ns_add_u32 s34, s30, 4096\ns_add_u32 s35, s31, 4096')
def common_setup(a,G01,G2,AR,IDX,L16):
    a(f'''v_lshlrev_b32 v{G01}, 4, v0
    v_add_u32 v1, 1024, v0
    v_lshlrev_b32 v{G2}, 3, v1
    v_and_b32 v2, 63, v0
    v_lshlrev_b32 v{L16}, 4, v2
    v_lshrrev_b32 v3, 4, v2
    v_and_b32 v4, 15, v2
    v_bfe_u32 v5, v4, 1, 1
    v_lshrrev_b32 v6, 2, v4
    v_and_b32 v7, 1, v4
    v_lshl_add_u32 v6, v6, 1, v7
    v_lshlrev_b32 v{AR}, 8, v3
    v_lshl_add_u32 v{AR}, v5, 7, v{AR}
    v_lshl_add_u32 v{AR}, v6, 4, v{AR}
    v_mov_b32 v{IDX}, 0x4444
    v_mov_b32 v7, 0xeeee
    v_cmp_eq_u32 vcc, 1, v5
    s_nop 1
    v_cndmask_b32 v{IDX}, v{IDX}, v7, vcc
    s_mov_b32 s42, 0x00003f80
    s_mov_b32 s43, 0x3f800000
    s_mov_b32 s40, 0x00ff00ff
    s_mov_b32 s41, 0x00ff00ff
    s_mov_b32 s45, {SPIN}
    s_lshl_b32 s36, s12, 16
    s_add_u32 s36, s36, {MLOC}
    s_lshl_b32 s18, s12, 3
    s_lshl_b32 s46, s12, 7
    s_add_u32 s46, s46, {FLAGS+0xD000}
    s_mov_b32 s16, 0''')
def post_load(a,verify):
    if 'ini' in OPT: a('s_memrealtime s[94:95]')
    if verify: verify()
    a(f'''s_mov_b32 s45, {SPIN}
    v_lshlrev_b32 v7, 3, v4
    s_mov_b32 s28, {FLAGS+0x10000}
    buffer_load_dwordx2 v[8:9], v7, s[8:11], s28 offen sc1
    s_waitcnt vmcnt(0)
    v_cmp_lt_i32 vcc, v9, v8
    s_and_b32 s19, vcc_lo, {0 if 'nonuma' in OPT else 0xffff}''')
def load_weights(a,blocks,dst,T0,tileoff_expr):
    NS=6; SL=24576
    def issue(b):
        B=blocks[b]
        for i in range(B['n']):
            a(f's_mul_i32 s28, s14, {B["n"]*1024}\ns_add_u32 m0, s28, {(b%NS)*SL+i*1024}\ns_add_u32 s29, s{B["sb"]}, {B["soff"]}')
            a(f'buffer_load_dwordx4 v{B["voff"]+i}, s[{B["srd"]}:{B["srd"]+3}], s29 offen lds')
    for b in range(min(NS-1,len(blocks))): issue(b)
    for b,B in enumerate(blocks):
        later=sum(blocks[x]['n'] for x in range(b+1,min(b+NS-1,len(blocks))))
        a(f's_waitcnt vmcnt({later}) lgkmcnt(0)\ns_barrier')
        if b+NS-1<len(blocks): issue(b+NS-1)
        for ti,(toff,op) in enumerate(B['ops']):
            a(f'v_add_u32 v{T0}, {(b%NS)*SL}, v{B["tra"][ti]}')
            for R in range(2):
                for P in range(2):
                    a(f'ds_read_b64_tr_b16 {dst(op,4*R+2*P)}, v{T0} offset:{(32*R+2*P)*B["rs"]}')
    a('s_waitcnt lgkmcnt(0)\ns_barrier')
def tr_addr(a,ds,rs):
    a(f'''v_lshrrev_b32 v8, 1, v3
    v_lshlrev_b32 v8, 4, v8
    v_and_b32 v9, 1, v3
    v_lshl_add_u32 v8, v9, 2, v8
    v_lshrrev_b32 v9, 2, v4
    v_and_b32 v10, 1, v9
    v_add_u32 v8, v8, v10
    v_lshrrev_b32 v11, 1, v9
    v_lshl_add_u32 v8, v11, 3, v8
    v_bfe_u32 v11, v8, 2, 2
    {'v_lshl_add_u32 v11, v11, 1, v10' if rs==256 else ''}
    v_mul_u32_u24 v8, {rs}, v8
    v_and_b32 v9, 3, v2
    v_lshl_add_u32 v8, v9, 3, v8''')
    for t,d in enumerate(ds): a(f's_mul_i32 s28, s14, {len(ds)}\ns_add_u32 s28, s28, {t}\nv_xor_b32 v9, s28, v11\nv_lshl_add_u32 v{d}, v9, 5, v8')
def qkv_dma_offsets(a,base):
    for i in range(6):
        a(f'''s_mul_i32 s28, s14, 384
        s_add_u32 s28, s28, {64*i}
        v_add_u32 v8, s28, v2
        v_mul_u32_u24 v9, 0xaaab, v8
        v_lshrrev_b32 v9, 20, v9
        v_mul_u32_u24 v10, 24, v9
        v_sub_u32 v10, v8, v10
        v_bfe_u32 v11, v9, 2, 2
        v_lshlrev_b32 v11, 1, v11
        v_xor_b32 v10, v10, v11
        v_mul_u32_u24 v9, 12288, v9
        v_lshl_add_u32 v{base+i}, v10, 4, v9''')
def seg_flag(a,segreg,t=36):
    a(f's_lshl_b32 s28, {segreg}, 7\ns_add_u32 s28, s28, {F_SEG}\ns_mov_b64 exec, 1\nv_mov_b32 v{t}, 0\nv_mov_b32 v{t+1}, 1\nbuffer_atomic_add v{t+1}, v{t}, s[8:11], s28 offen sc1\ns_mov_b64 exec, -1')
def vu_flag(a,segreg,L16,t):
    lp=a.lab('fu'); ok=a.lab('fo')
    a(f's_lshr_b32 s28, {segreg}, 2\ns_lshl_b32 s28, s28, 5\ns_lshl_b32 s29, s12, 4\ns_add_u32 s28, s28, s29\ns_lshl_b32 s28, s28, 2\ns_add_u32 s28, s28, {F_VU}\nv_bfe_u32 v{t}, v{L16}, 4, 4\nv_lshlrev_b32 v{t}, 2, v{t}\n{lp}:\nbuffer_load_dword v{t+1}, v{t}, s[8:11], s28 offen sc1\ns_waitcnt vmcnt(0)\nv_cmp_gt_u32 vcc, 2, v{t+1}\ns_cbranch_vccz {ok}\ns_sub_u32 s45, s45, 1\ns_cbranch_scc0 {lp}\ns_mov_b32 s45, 0\n{ok}:')
def prof_out(a,prof):
    if 'rt' in OPT: a(f's_memrealtime s[98:99]\ns_memtime s[100:101]\ns_waitcnt lgkmcnt(0)\n'+('' if 'ini' in OPT else 's_sub_u32 s94, s100, s88\n')+f's_lshl_b32 s28, s12, 5\ns_add_u32 s28, s28, s46\ns_lshl_b32 s28, s28, 4\ns_add_u32 s28, s28, {PROF+0x10000}\nv_mov_b32 v0, 0\nv_mov_b32 v4, s94\nv_mov_b32 v5, s96\nv_mov_b32 v6, s98\nv_mov_b32 v7, s92\nbuffer_store_dwordx4 v[4:7], v0, s[8:11], s28 offen')
    return
    a(f's_lshl_b32 s28, s12, 5\ns_add_u32 s28, s28, s46\ns_lshl_b32 s28, s28, 2\ns_add_u32 s28, s28, s14\ns_lshl_b32 s28, s28, 7\ns_add_u32 s28, s28, {PROF}\nv_mbcnt_lo_u32_b32 v0, -1, 0\nv_lshlrev_b32 v0, 2, v0\ns_mov_b64 exec, 0xffff\nbuffer_store_dword v{a.pv}, v0, s[8:11], s28 offen\nv_mov_b32 v1, s45\nbuffer_store_dword v1, v0, s[8:11], s28 offen offset:64')
def prof_init(a,prof,pv):
    a.ns=0; a.pv=pv
    if 'rt' in OPT: a('s_memrealtime s[96:97]\ns_memtime s[88:89]')

def gen_S(a,slow,prof,overlap=False,verify=None):
    LS=' sc1' if slow else ''
    G01,G2,AR,IDX,L16,QW,WL,FR,ST,ST2,QR=range(120,131)
    WV=136; NREG=47
    KXL=16384; QXL=28672; WLDS=40960; QST=10240; KST=13312; ZA=147456
    common_setup(a,G01,G2,AR,IDX,L16)
    order=[6*k+T for k in range(4) for T in range(6)]+[6*k+T for T in range(6) for k in range(4,10)]
    ldsops=[order[i] for i in (3,7,11,15,19,23,27,31,35,39,43,46,49)]
    regops=[n for n in range(60) if n not in ldsops]
    def dst(n,o):
        if n in regops: return wreg2(regops.index(n),WV,o)
        j=ldsops.index(n); r=16+8*j+o
        return f'v[{r}:{r+1}]'
    qkv_dma_offsets(a,130); tr_addr(a,(12,14,15),384)
    a('s_mul_i32 s47, s15, 384')
    blocks=[]
    for k in range(10):
        for m in range(2):
            blocks.append(dict(srd=20+4*m,sb=47,soff=k*64*12288,rs=384,n=6,voff=130,tra=(12,14,15),ops=[(32*t,6*k+3*m+t) for t in range(3)]))
    load_weights(a,blocks,dst,13,None)
    post_load(a,verify)
    a(f's_mul_i32 s28, s14, {13*2048}\ns_add_u32 s28, s28, {WLDS}\nv_add_u32 v{WL}, s28, v{L16}')
    for j in range(13):
        for hlf in range(2): a(f'ds_write_b128 v{WL}, v[{16+8*j+4*hlf}:{19+8*j+4*hlf}] offset:{2048*j+1024*hlf}')
    a('s_waitcnt lgkmcnt(0)')
    a(f'''v_lshrrev_b32 v8, 2, v4
    v_and_b32 v8, 1, v8
    v_lshlrev_b32 v8, 7, v8
    v_lshl_add_u32 v8, v3, 5, v8
    v_lshrrev_b32 v9, 3, v4
    v_lshl_add_u32 v8, v9, 3, v8
    v_and_b32 v9, 3, v4
    v_lshl_add_u32 v8, v9, 1, v8
    s_mul_i32 s28, s14, 768
    s_add_u32 s28, s28, {QST}
    v_add_u32 v{QW}, s28, v8
    v_and_b32 v9, 7, v4
    v_lshlrev_b32 v9, 4, v9
    v_lshl_add_u32 v{FR}, v3, 7, v9
    s_and_b32 s28, s14, 2
    s_mul_i32 s28, s28, 3072
    v_add_u32 v{QR}, s28, v{L16}''')
    w0=a.lab('w0'); wd=a.lab('wd')
    a(f'v_mov_b32 v10, 0xf149f2ca\nv_mov_b32 v11, 0\nv_cmp_gt_u32 vcc, 2, v3\ns_nop 1')
    for i in range(4): a(f'v_cndmask_b32 v{116+i}, v10, v11, vcc')
    a(f's_cmp_eq_u32 s14, 0\ns_cbranch_scc1 {w0}')
    a(f's_sub_u32 s28, s14, 1\ns_lshl_b32 s28, s28, 4\nv_add_u32 v8, s28, v4\nv_lshrrev_b32 v9, 1, v3\nv_lshlrev_b32 v9, 4, v9\nv_and_b32 v12, 1, v3\nv_lshl_add_u32 v9, v12, 2, v9')
    for t in range(2):
        for j in range(4): a(f'v_add_u32 v13, {8*t+j}, v9\nv_cmp_le_u32 vcc, v13, v8\ns_nop 1\nv_cndmask_b32 v{108+4*t+j}, v10, v11, vcc')
    a(f'''v_lshrrev_b32 v9, 1, v3
    v_lshlrev_b32 v9, 10, v9
    v_lshl_add_u32 v9, v8, 5, v9
    v_lshl_add_u32 v{ST}, v12, 4, v9
    v_lshlrev_b32 v9, 4, v8
    v_lshl_add_u32 v9, v3, 3, v9
    v_add_u32 v{ST2}, 2048, v9
    s_branch {wd}
    {w0}:''')
    a(f'''v_lshrrev_b32 v8, 3, v4
    v_lshl_add_u32 v{ST}, v8, 3, v{FR}
    v_and_b32 v9, 7, v4
    v_lshlrev_b32 v9, 4, v9
    v_lshl_add_u32 v9, v3, 2, v9
    v_add_u32 v{ST2}, 512, v9
    v_mov_b32 v9, {ZA-QST}
    v_cndmask_b32 v132, v9, v{FR}, s[40:41]
    v_cndmask_b32 v133, v{FR}, v9, s[40:41]
    v_lshrrev_b32 v9, 2, v4
    v_and_b32 v12, 1, v4
    v_lshl_add_u32 v9, v9, 1, v12
    v_lshlrev_b32 v9, 4, v9
    v_lshl_add_u32 v134, v3, 7, v9
    v_cndmask_b32 v112, v10, v11, s[40:41]
    v_cndmask_b32 v113, v10, v11, s[40:41]
    v_mov_b32 v114, 0
    v_mov_b32 v115, 0
    v_mov_b32 v116, {hex(fbits(192**-0.5*math.log2(math.e)))}
    v_mov_b32 v12, 0
    v_mov_b32 v13, 0
    v_mov_b32 v14, 0
    v_mov_b32 v15, 0
    v_add_u32 v9, {ZA}, v{L16}
    ds_write_b128 v9, v[12:15]
    ds_write_b128 v9, v[12:15] offset:1024
    ds_write_b128 v9, v[12:15] offset:2048
    {wd}:
    s_mov_b32 s44, {hex(fbits(192**-0.5*math.log2(math.e)))}
    s_mul_i32 s37, s15, 12288
    s_lshl_b32 s50, s12, 20
    s_mul_i32 s28, s13, 10240
    s_add_u32 s50, s50, s28
    s_add_u32 s50, s50, {UR}
    s_mul_i32 s51, s15, 10240
    s_add_u32 s51, s51, {UM}
    v_add_u32 v135, 4096, v{G01}
    s_mul_i32 s38, s13, 640
    s_lshl_b32 s28, s12, 16
    s_add_u32 s38, s38, s28
    s_add_u32 s38, s38, {PR}
    s_mul_i32 s39, s15, 2560
    s_add_u32 s39, s39, {PX}''')
    def rb_flags(segreg):
        if not overlap: return
        lp=a.lab('fq'); ok=a.lab('fo')
        a(f's_and_b32 s28, {segreg}, 3\ns_cbranch_scc1 {ok}\ns_lshr_b32 s28, {segreg}, 2\ns_lshl_b32 s28, s28, 5\ns_add_u32 s28, s28, s15\ns_lshl_b32 s28, s28, 2\ns_add_u32 s28, s28, {F_QK}\nv_bfe_u32 v36, v{L16}, 4, 1\nv_lshlrev_b32 v36, 12, v36\n{lp}:\nbuffer_load_dword v37, v36, s[8:11], s28 offen sc1\ns_waitcnt vmcnt(0)\nv_cmp_gt_u32 vcc, 2, v37\ns_cbranch_vccz {ok}\ns_sub_u32 s45, s45, 1\ns_cbranch_scc0 {lp}\ns_mov_b32 s45, 0\n{ok}:')
    def dma_kq(segreg):
        a(f's_mul_i32 s28, {segreg}, {32*12288}\ns_add_u32 s28, s28, s37\ns_add_u32 s29, s28, {QX}\ns_add_u32 s28, s28, {KX}')
        if 'nokq' in OPT: return
        for i in range(12):
            a(f's_mov_b32 m0, {KXL+1024*i}\ns_nop 0\nbuffer_load_dwordx4 v{L16}, s[8:11], s28 offen sc1 lds\ns_add_u32 s28, s28, 1024')
        for i in range(12):
            a(f's_mov_b32 m0, {QXL+1024*i}\ns_nop 0\nbuffer_load_dwordx4 v{L16}, s[8:11], s29 offen sc1 lds\ns_add_u32 s29, s29, 1024')
    NW=10 if 'warm' in OPT else 0
    def warm_u(segreg):
        if overlap: vu_flag(a,segreg,L16,36)
        a(f's_mul_i32 s28, {segreg}, {32*40960}\ns_add_u32 s28, s28, s48')
        for i in range(NW): a(f'buffer_load_dword v{4}, v{108+i%5}, s[8:11], s28 offen offset:{64*(i//5)}')
    a(f's_mul_i32 s48, s12, {16*40960}\ns_add_u32 s48, s48, {UX}\ns_mul_i32 s28, s13, 40\ns_mul_i32 s29, s14, 160')
    for i,d in enumerate((131,119,117)):
        a(f'''v_and_b32 v8, {63 if i<2 else 31}, v2
        v_add_u32 v8, {64*i}, v8
        v_add_u32 v8, s29, v8
        v_and_b32 v13, 1, v8
        v_lshrrev_b32 v8, 1, v8
        v_mul_u32_u24 v9, 0xccd, v8
        v_lshrrev_b32 v9, 16, v9
        v_mul_u32_u24 v10, 20, v9
        v_sub_u32 v10, v8, v10
        v_cmp_le_u32 vcc, 10, v10
        v_subrev_u32 v11, 10, v10
        s_nop 0
        v_cndmask_b32 v10, v10, v11, vcc
        v_cndmask_b32 v11, 0, 1, vcc
        v_lshl_add_u32 v10, v10, 2, s28
        v_mul_u32_u24 v9, 40960, v9
        v_lshl_add_u32 v9, v11, 10, v9
        v_lshrrev_b32 v11, 5, v10
        v_lshl_add_u32 v9, v11, 11, v9
        v_and_b32 v11, 31, v10
        v_lshl_add_u32 v9, v11, 5, v9
        v_lshl_add_u32 v{d}, v13, 6, v9''')
    n3=a.lab('n3'); a(f's_cmp_eq_u32 s14, 3\ns_cbranch_scc0 {n3}'); rb_flags('s16'); dma_kq('s16'); a(f'{n3}:')
    prof_init(a,prof,0)
    top=a.lab('Sstep'); a(f'.p2align 6\n{top}:')
    step_offsets(a)
    for i in range(12): a(f'v_pk_mov_b32 v[{48+2*i}:{49+2*i}], 0, 0')
    a(f's_sub_u32 s49, s16, 1\ns_max_i32 s49, s49, 0\ns_mul_i32 s53, s49, {32*10240}\ns_add_u32 s53, s53, s51\ns_and_b32 s52, s49, 3\ns_lshl_b32 s52, s52, 18\ns_add_u32 s52, s52, s50\ns_add_u32 s54, s16, 2\ns_and_b32 s54, s54, 3\ns_lshl_b32 s54, s54, 18\ns_add_u32 s54, s54, s50\ns_add_u32 s55, s16, 1\ns_min_u32 s55, s55, {NSTEP-1}\ns_mul_i32 s55, s55, {32*40960}\ns_add_u32 s55, s55, s48')
    stg={}
    def rdw(j):
        r=72+8*(j%3); stg[ldsops[j]]=r
        a.lds(f'ds_read_b128 v[{r}:{r+3}], v{WL} offset:{2048*j}',('w',j)); a.lds(f'ds_read_b128 v[{r+4}:{r+7}], v{WL} offset:{2048*j+1024}',('w',j))
    for j in range(3): rdw(j)
    gather(a,96,36,G01,G2,L16,prof)
    ard=lambda k:a.lds(f'ds_read_b128 v[{4*k}:{4*k+3}], v{AR} offset:{1024*k}',('A',k))
    ard(0); ard(1)
    def tri(op,r,sreg,fl):
        return [f'buffer_{op}_dwordx4 v[{r(0)}:{r(0)+3}], v{G01}, s[8:11], {sreg} offen{fl}',
                f'buffer_{op}_dwordx4 v[{r(1)}:{r(1)+3}], v135, s[8:11], {sreg} offen{fl}',
                f'buffer_{op}_dwordx2 v[{r(2)}:{r(2)+1}], v{G2}, s[8:11], {sreg} offen{fl}']
    cp_ld=tri('load',lambda i:96+4*i,'s52',' sc1'); cp_st=tri('store',lambda i:96+4*i,'s53',' sc1'); po_st=tri('store',lambda i:40,'s54',LS)
    po_st[0]='v_mov_b32 v40, -1\nv_mov_b32 v41, -1\nv_mov_b32 v42, -1\nv_mov_b32 v43, -1\n'+po_st[0]
    nxt=3
    def post(T):
        b=48+4*T; off=T%3*256+(KST-QST if T>=3 else 0)
        return [f'v_pk_add_f32 v[{b}:{b+1}], v[{b}:{b+1}], v[{b+2}:{b+3}]\nv_cvt_pk_bf16_f32 v{b+1}, v{b}, v{b+1}',
          lambda:(a.lds(f'ds_write_b16 v{QW}, v{b+1} offset:{off}'),a.lds(f'ds_write_b16_d16_hi v{QW}, v{b+1} offset:{off+16}'))]
    pend=[]
    for i,n in enumerate(order):
        k,T=divmod(n,6)
        toks=[('A',k)]
        if n in ldsops: toks.append(('w',ldsops.index(n)))
        a.need(*toks)
        B=f'v[{stg[n]}:{stg[n]+7}]' if n in ldsops else wreg(regops.index(n),WV)
        a(f'v_smfmac_f32_16x16x64_bf16 v[{48+4*T}:{51+4*T}], v[{4*k}:{4*k+3}], {B}, v{IDX}')
        if n in ldsops and nxt<13: rdw(nxt); nxt+=1
        if i in (30,31) and 'nokr' not in OPT: a.lds(f'ds_read_b128 v[{40+4*(i-30)}:{43+4*(i-30)}], v{L16} offset:{KXL+1024*(i-20)}')
        if 24<=i<28 and 'nokr' not in OPT: a.lds(f'ds_read_b128 v[{4*(i-24)}:{4*(i-24)+3}], v{L16} offset:{KXL+1024*(i-24)}')
        if i>=54 and 'nokr' not in OPT: a.lds(f'ds_read_b128 v[{4*k}:{4*k+3}], v{L16} offset:{KXL+1024*k}')
        if i<8: ard(i+2)
        if 'cpw3' not in OPT:
            P_=CPS
            if i in P_[0:3]: a(cp_ld[P_.index(i)])
            if i in P_[3:6]: a(po_st[P_.index(i)-3])
            if i==P_[6]: a('s_waitcnt vmcnt(3)')
            if i in P_[6:9]: a(cp_st[P_.index(i)-6])
        if 'warm' in OPT and i in (32,36,40): a(f'buffer_load_dword v118, v{131 if i==32 else 119 if i==36 else 117}, s[8:11], s55 offen')
        if i in (23,41): stamp(a,prof,0)
        if i>=24 and k==9: pend.append([i+8,post(T)])
        if pend and i>=pend[0][0]:
            x=pend[0][1].pop(0); x() if callable(x) else a(x)
            if not pend[0][1]: pend.pop(0)
    stamp(a,prof,3)
    assert len(pend)==2
    a('s_nop 0')
    for x in pend[0][1]: x() if callable(x) else a(x)
    a('s_nop 1')
    for x in pend[1][1]: x() if callable(x) else a(x)
    a('s_waitcnt lgkmcnt(0)\ns_barrier'); a.q=[]
    stamp(a,prof,4)
    wx=a.lab('wx'); w3=a.lab('w3'); wend=a.lab('wend')
    a(f's_cmp_eq_u32 s14, 0\ns_cbranch_scc0 {wx}')
    def scores():
        for k in range(6):
            a.need(('q',k),('k',k))
            for t in range(2):
                f=6*t+k; C=f'v[{108+4*t}:{111+4*t}]' if k==0 else f'v[{96+4*t}:{99+4*t}]'
                a(f'v_mfma_f32_16x16x32_bf16 v[{96+4*t}:{99+4*t}], v[{4*f}:{4*f+3}], v[{72+4*k}:{75+4*k}], {C}')
            C='0' if k==0 else 'v[104:107]'
            a(f'v_mfma_f32_16x16x32_bf16 v[104:107], v[{48+4*k}:{51+4*k}], v[{72+4*k}:{75+4*k}], {C}')
    def xl(op,r,t,full):
        if not full: a(f's_nop 1\n{op}_dpp v{r}, v{r}, v{r} row_ror:8 row_mask:0xf bank_mask:0xf')
        for sw in ('16','32'):
            a(f'v_mov_b32 v{t}, v{r}\ns_nop 1\nv_permlane{sw}_swap_b32 v{r}, v{t}\n{op} v{r}, v{r}, v{t}')
    def qk(k):
        a.lds(f'ds_read_b128 v[{72+4*k}:{75+4*k}], v132 offset:{QST+512*k}',('q',k))
        if k<2: a.lds(f'ds_read_b128 v[{100+4*k}:{103+4*k}], v133 offset:{QST+512*k}',('r',k))
        a.lds(f'ds_read_b128 v[{48+4*k}:{51+4*k}], v134 offset:{KST+512*k}',('k',k))
    qk(0); qk(1)
    a(f's_and_b32 s28, s16, 3\ns_lshl_b32 s28, s28, 14\ns_add_u32 s32, s28, s38')
    for k in range(6):
        r=100+4*k if k<2 else 4*(k-2)
        a.need(('q',k))
        a(f'v_mfma_f32_16x16x32_bf16 v[96:99], v[{4*k}:{4*k+3}], v[{72+4*k}:{75+4*k}], {"0" if k==0 else "v[96:99]"}')
        if k<4: a.lds(f'ds_read_b128 v[{4*k}:{4*k+3}], v133 offset:{QST+512*(k+2)}',('r',k+2))
        a.need(('r',k))
        a(f'v_mfma_f32_16x16x32_bf16 v[96:99], v[{24+4*k}:{27+4*k}], v[{r}:{r+3}], v[96:99]')
        if k<4: qk(k+2)
        a.need(('k',k))
        a(f'v_mfma_f32_16x16x32_bf16 v[108:111], v[{48+4*k}:{51+4*k}], v[{72+4*k}:{75+4*k}], {"v[112:115]" if k==0 else "v[108:111]"}')
    ns0=a.ns; stamp(a,prof,0)
    a('s_nop 6\nv_max3_f32 v6, v96, v97, v98\nv_max_f32 v7, v108, v109\nv_max3_f32 v6, v6, v99, v7'); xl('v_max_f32',6,7,False)
    a('v_mul_f32 v6, s44, v6')
    for b in (96,98,108): a(f'v_pk_fma_f32 v[{b}:{b+1}], v[{b}:{b+1}], v[116:117], v[6:7] op_sel_hi:[1,0,0] neg_lo:[0,0,1] neg_hi:[0,0,1]')
    for j in (96,97,98,99,108,109): a(f'v_exp_f32 v{j}, v{j}')
    a('v_pk_add_f32 v[6:7], v[96:97], v[98:99]\nv_pk_add_f32 v[6:7], v[6:7], v[108:109]\nv_add_f32 v6, v6, v7'); xl('v_add_f32',6,7,False)
    a('v_rcp_f32 v6, v6\ns_nop 0')
    for b in (96,98,108): a(f'v_pk_mul_f32 v[{b}:{b+1}], v[{b}:{b+1}], v[6:7] op_sel_hi:[1,0]')
    a(f'v_cvt_pk_bf16_f32 v8, v96, v97\nv_cvt_pk_bf16_f32 v9, v98, v99\nv_cvt_pk_bf16_f32 v10, v108, v109')
    a(f'buffer_store_dwordx2 v[8:9], v{ST}, s[8:11], s32 offen{LS}\ns_mov_b64 exec, s[40:41]\nbuffer_store_dword v10, v{ST2}, s[8:11], s32 offen{LS}\ns_mov_b64 exec, -1')
    stamp(a,prof,0)
    a(f's_barrier\ns_branch {wend}\n{wx}:'); a.q=[]; a.ns=ns0; stamp(a,prof,0); stamp(a,prof,0)
    a(f's_cmp_eq_u32 s14, 3\ns_cbranch_scc1 {w3}')
    for k in range(6): a.lds(f'ds_read_b128 v[{72+4*k}:{75+4*k}], v{QR} offset:{QXL+1024*k}',('q',k)); a.lds(f'ds_read_b128 v[{48+4*k}:{51+4*k}], v{FR} offset:{KST+512*k}',('k',k))
    a(f's_mul_i32 s28, s16, {32*2560}\ns_add_u32 s32, s28, s39')
    scores()
    a('s_nop 6')
    a('s_nop 1\nv_add_f32 v104, v104, v116\nv_add_f32 v105, v105, v116\nv_add_f32 v106, v106, v116\nv_add_f32 v107, v107, v116')
    a('v_max3_f32 v6, v96, v97, v98\nv_max3_f32 v7, v99, v100, v101\nv_max3_f32 v8, v102, v103, v104\nv_max3_f32 v9, v105, v106, v107\nv_max3_f32 v6, v6, v7, v8\nv_max_f32 v6, v6, v9'); xl('v_max_f32',6,7,True)
    a('v_mul_f32 v6, s44, v6')
    for j in range(12): a(f'v_fma_f32 v{96+j}, v{96+j}, s44, -v6')
    for j in range(12): a(f'v_exp_f32 v{96+j}, v{96+j}')
    a('v_add_f32 v6, v96, v97')
    for j in range(2,12): a(f'v_add_f32 v6, v6, v{96+j}')
    xl('v_add_f32',6,7,True)
    a('v_rcp_f32 v6, v6\ns_nop 0')
    for j in range(12): a(f'v_mul_f32 v{96+j}, v{96+j}, v6')
    for j in range(6): a(f'v_cvt_pk_bf16_f32 v{8+j}, v{96+2*j}, v{97+2*j}')
    a(f'buffer_store_dwordx4 v[8:11], v{ST}, s[8:11], s32 offen sc1\ns_mov_b32 exec_hi, 0\nbuffer_store_dwordx2 v[12:13], v{ST2}, s[8:11], s32 offen sc1\ns_mov_b32 exec_hi, -1')
    a(f's_barrier\ns_branch {wend}\n{w3}:'); a.q=[]
    a(f's_add_u32 s28, s16, 2\ns_and_b32 s28, s28, 3\ns_lshl_b32 s28, s28, 14\ns_add_u32 s28, s28, s38\nv_mov_b32 v0, -1\nv_mov_b32 v1, -1\nv_mov_b32 v2, -1\nv_mov_b32 v3, -1\ns_mov_b32 exec_hi, 0xff\nbuffer_store_dwordx4 v[0:3], v{L16}, s[8:11], s28 offen{LS}\ns_mov_b32 exec_hi, -1')
    def ur_ld(segexpr):
        a(f'{segexpr}\ns_and_b32 s28, s49, 3\ns_lshl_b32 s28, s28, 18\ns_add_u32 s28, s28, s50')
        for i in range(10): a(f'buffer_load_dwordx4 v[{8+4*i}:{11+4*i}], v{L16}, s[8:11], s28 offen offset:{(i%4)*1024} sc1'+('\ns_add_u32 s28, s28, 4096' if i%4==3 else ''))
    def um_st():
        a(f's_mul_i32 s28, s49, {32*10240}\ns_add_u32 s28, s28, s51')
        for i in range(10): a(f'buffer_store_dwordx4 v[{8+4*i}:{11+4*i}], v{L16}, s[8:11], s28 offen offset:{(i%4)*1024} sc1'+('\ns_add_u32 s28, s28, 4096' if i%4==3 else ''))
    if 'steps' in OPT: a(f's_memrealtime s[2:3]\ns_waitcnt lgkmcnt(0)\ns_lshl_b32 s28, s15, 8\ns_lshl_b32 s29, s16, 2\ns_add_u32 s28, s28, s29\ns_add_u32 s28, s28, {PROF+0x40000}\nv_mov_b32 v4, 0\nv_mov_b32 v5, s2\nbuffer_store_dword v5, v4, s[8:11], s28 offen')
    if 'cpw3' in OPT:
        ur_ld('s_nop 0')
        for i in range(10): a(f'buffer_store_dwordx4 v[0:3], v{L16}, s[8:11], s54 offen offset:{(i%4)*1024}{LS}'+('\ns_add_u32 s54, s54, 4096' if i%4==3 else ''))
    nf=a.lab('nf'); a(f's_barrier\ns_cmp_lt_u32 s16, 2\ns_cbranch_scc1 {nf}\ns_sub_u32 s29, s16, 2'); seg_flag(a,'s29',104); a(f'{nf}:')
    def side():
        return
        for x in cp_ld+po_st: a(x)
        a('s_waitcnt vmcnt(3)')
        for x in cp_st: a(x)
    w4=a.lab('w4')
    if 'cpw3' in OPT:
        a('s_waitcnt vmcnt(10)')
        if 'kqfirst' not in OPT: um_st()
    a(f's_add_u32 s33, s16, 1\ns_min_u32 s33, s33, {NSTEP-1}'); dma_kq('s33')
    if 'kqfirst' in OPT: um_st()
    a(f's_add_u32 s33, s16, 2\ns_min_u32 s33, s33, {NSTEP-1}'); rb_flags('s33')
    a(f's_branch {w4}\n{wend}:'); side()
    if SLP: a(f's_sleep {SLP}')
    a(f'{w4}:')
    stamp_end(a,prof)
    a(f's_add_u32 s16, s16, 1\ns_cmp_lt_u32 s16, {NSTEP}\ns_cbranch_scc1 {top}')
    e3=a.lab('e3'); rt=a.lab('rt')
    a(f's_waitcnt vmcnt(0)\ns_barrier\ns_cmp_eq_u32 s14, 3\ns_cbranch_scc0 {e3}\ns_mov_b32 s29, {NSTEP-2}'); seg_flag(a,'s29',104)
    a(f'{rt}:'); ur_ld(f's_mov_b32 s49, {NSTEP-1}'); a('s_waitcnt vmcnt(0)'); check(a,[8+4*i for i in range(10)],0,rt); um_st()
    a(f's_waitcnt vmcnt(0)\ns_mov_b32 s29, {NSTEP-1}'); seg_flag(a,'s29',104); a(f'{e3}:')
    a('s_mov_b32 s46, s13')
    prof_out(a,prof)
import struct
def fbits(x): return struct.unpack('<I',struct.pack('<f',x))[0]

GV3='v_subrev_u32 v{G01}, 1024, v{G01}\nv_subrev_u32 v13, 64, v0\nv_and_b32 v13, 127, v13\nv_add_u32 v13, 1152, v13\nv_lshlrev_b32 v{G2}, 3, v13'
def gen_V(a,slow,prof,overlap=False,verify=None):
    LS=' sc1' if slow else ''
    G01,G2,AR,IDX,L16,VW,WL,UA,UA2,US,RU,RU2,RP,RPM,RW,FI,FO=range(148,165)
    WV=168; VST=10240; WLDS=16384; NL=17
    common_setup(a,G01,G2,AR,IDX,L16)
    order=[3*k+T for k in range(4) for T in range(3)]+[3*k+T for T in range(3) for k in range(4,10)]+list(range(30,60))
    ldsops=[order[i] for i in range(60) if i%7 in (2,5)][:NL]; assert len(ldsops)==NL
    regops=[n for n in range(60) if n not in ldsops]
    hold={}
    for j,n in enumerate(ldsops): hold[n]=14+8*j if j<16 else None
    def dst(n,o):
        if n in regops: return wreg2(regops.index(n),WV,o)
        r=12+8*ldsops.index(n)+o
        return f'v[{r}:{r+1}]'
    qkv_dma_offsets(a,153); tr_addr(a,(163,164,165),384); tr_addr(a,(166,5),256)
    for i in range(4):
        a(f's_lshl_b32 s28, s14, 4\ns_add_u32 s28, s28, {4*i}\nv_add_u32 v8, s28, v3\nv_mul_u32_u24 v8, 1280, v8\nv_and_b32 v9, 1, v3\nv_or_b32 v9, {2*i}, v9\nv_lshlrev_b32 v9, 1, v9\nv_xor_b32 v9, v9, v4\nv_lshl_add_u32 v{159+i}, v9, 4, v8')
    a('s_mul_i32 s47, s15, 384\ns_mul_i32 s48, s15, 245760')
    blocks=[]
    for k in range(10):
        blocks.append(dict(srd=20,sb=47,soff=k*64*12288,rs=384,n=6,voff=153,tra=(163,164,165),ops=[(32*t,3*k+t) for t in range(3)]))
    for k2 in range(3):
        for j in range(5):
            blocks.append(dict(srd=24,sb=48,soff=k2*64*1280+j*256,rs=256,n=4,voff=159,tra=(166,5),ops=[(32*t,30+3*(2*j+t)+k2) for t in range(2)]))
    load_weights(a,blocks,dst,167,None)
    post_load(a,verify)
    a(f's_mul_i32 s28, s14, {NL*2048}\ns_add_u32 s28, s28, {WLDS}\nv_add_u32 v{WL}, s28, v{L16}')
    for j in range(NL):
        for hlf in range(2): a(f'ds_write_b128 v{WL}, v[{12+8*j+4*hlf}:{15+8*j+4*hlf}] offset:{2048*j+1024*hlf}')
    a('s_waitcnt lgkmcnt(0)')
    a(f'''v_lshrrev_b32 v8, 3, v4
    v_lshlrev_b32 v8, 7, v8
    v_lshl_add_u32 v8, v3, 5, v8
    v_and_b32 v9, 7, v4
    v_lshl_add_u32 v8, v9, 1, v8
    s_mul_i32 s28, s14, 768
    s_add_u32 s28, s28, {VST}
    v_add_u32 v{VW}, s28, v8
    s_mul_i32 s28, s13, 40
    v_add_u32 v10, s28, v4
    v_add_u32 v11, 16, v10
    v_add_u32 v12, s28, v9
    v_add_u32 v12, 32, v12''')
    for (src,d) in ((10,UA),(11,UA2),(12,167)):
        a(f'''v_lshrrev_b32 v13, 5, v{src}
        v_lshlrev_b32 v13, 11, v13
        v_and_b32 v14, 31, v{src}
        v_lshl_add_u32 v13, v14, 5, v13
        v_lshrrev_b32 v14, 1, v3
        v_lshl_add_u32 v13, v14, 10, v13
        v_and_b32 v14, 1, v3
        v_lshl_add_u32 v{d}, v14, 4, v13''')
    a(f'''v_lshrrev_b32 v13, 1, v3
    v_lshlrev_b32 v13, 11, v13
    v_and_b32 v14, 1, v3
    v_lshl_add_u32 v13, v14, 8, v13
    v_lshl_add_u32 v13, v4, 4, v13
    s_lshl_b32 s28, s14, 9
    v_add_u32 v{US}, s28, v13
    v_lshlrev_b32 v13, 4, v4
    v_lshl_add_u32 v13, v3, 2, v13
    v_add_u32 v166, s28, v13
    s_lshl_b32 s28, s14, 2
    v_add_u32 v13, s28, v3
    v_mul_u32_u24 v14, 10240, v13
    v_lshl_add_u32 v{RU}, v10, 4, v14
    v_lshl_add_u32 v{RU2}, v12, 4, v14
    v_mul_u32_u24 v14, 640, v13
    v_lshl_add_u32 v14, v9, 4, v14
    v_add_u32 v{RPM}, 512, v14
    s_mul_i32 s28, s14, 2560
    v_lshlrev_b32 v14, 7, v3
    v_lshl_add_u32 v14, v9, 4, v14
    v_lshrrev_b32 v15, 3, v4
    v_mul_u32_u24 v15, 640, v15
    v_add3_u32 v{RP}, s28, v14, v15
    s_mul_i32 s28, s14, 1536
    s_add_u32 s28, s28, 155648
    v_add_u32 v{RW}, s28, v14
    v_lshrrev_b32 v13, 3, v2
    v_lshlrev_b32 v13, 8, v13
    v_lshl_add_u32 v{FI}, v9, 4, v13
    {'' if 'v3' not in OPT else GV3.format(G01=G01,G2=G2)}
    v_add_u32 v{FI}, 155648, v{FI}
    s_mul_i32 s28, s13, 640
    v_add_u32 v{FO}, s28, v{L16}
    s_lshl_b32 s37, s12, 4
    s_lshl_b32 s28, s14, 2
    s_add_u32 s37, s37, s28
    s_mul_i32 s37, s37, 40960
    s_add_u32 s37, s37, {UX}
    s_lshl_b32 s38, s12, 20
    s_add_u32 s38, s38, {UR}
    s_mul_i32 s47, s13, 10240
    s_mul_i32 s39, s15, 10240
    s_add_u32 s39, s39, {UM}
    s_xor_b32 s49, s12, 1
    s_lshl_b32 s49, s49, 3
    v_cmp_gt_u32 vcc, 8192, v{FO}
    s_mov_b64 s[58:59], vcc''')
    for i in range(12): a(f'v_mov_b32 v{136+i}, 0')
    if 'fin1' not in OPT: a(f'''s_and_b32 s28, s14, 1
    s_mul_i32 s28, s28, 48
    v_add_u32 v13, s28, v2
    v_lshlrev_b32 v166, 4, v13
    v_add_u32 v166, 155648, v166
    v_lshrrev_b32 v14, 4, v13
    v_lshlrev_b32 v14, 7, v14
    v_and_b32 v15, 7, v13
    v_lshl_add_u32 v14, v15, 4, v14
    v_bfe_u32 v15, v13, 3, 1
    v_lshl_add_u32 v14, v15, 3, v14
    s_mul_i32 s28, s13, 640
    v_add_u32 v{FI}, s28, v14
    v_cmp_gt_u32 vcc, 8192, v{FI}
    s_mov_b64 s[4:5], vcc
    s_mov_b32 s6, -1
    s_cmp_eq_u32 s14, 0
    s_cselect_b32 s7, 0xffff, 0''')
    def ux_flag(segreg):
        if overlap: vu_flag(a,segreg,L16,100)
    ux_flag('s16')
    prof_init(a,prof,16)
    top=a.lab('Vstep'); a(f'.p2align 6\n{top}:')
    step_offsets(a)
    for i in range(6): a(f'v_pk_mov_b32 v[{88+2*i}:{89+2*i}], 0, 0')
    stg={}
    def rdw(j):
        r=100+8*(j%3); stg[ldsops[j]]=r
        a.lds(f'ds_read_b128 v[{r}:{r+3}], v{WL} offset:{2048*j}',('w',j)); a.lds(f'ds_read_b128 v[{r+4}:{r+7}], v{WL} offset:{2048*j+1024}',('w',j))
    for j in range(3): rdw(j)
    a(f'''s_mul_i32 s50, s16, {32*40960}
    s_add_u32 s50, s50, s37
    s_add_u32 s28, s16, 2
    s_and_b32 s28, s28, 3
    s_lshl_b32 s51, s28, 18
    s_add_u32 s51, s51, s38
    s_add_u32 s51, s51, s47
    s_lshl_b32 s28, s28, 14
    s_add_u32 s60, s28, s36
    s_sub_u32 s54, s16, 1
    s_max_i32 s54, s54, 0
    s_mul_i32 s54, s54, {32*10240}
    s_add_u32 s54, s54, s39
    s_and_b32 s28, s16, 3
    s_lshl_b32 s55, s28, 18
    s_add_u32 s55, s55, s38
    s_add_u32 s56, s55, s47
    s_lshl_b32 s57, s28, 14
    s_add_u32 s57, s57, s36
    s_add_u32 s57, s57, {PR-MLOC}''')
    MK,FX=('s[58:59]',FO) if 'fin1' in OPT else ('s[4:5]',FI)
    w0_=a.lab('w0'); w1_=a.lab('w1'); a(f's_cmp_eq_u32 s14, {1 if "fin1" in OPT else 2}\ns_cbranch_scc0 {w1_}')
    a(f's_add_u32 s28, s16, 2\ns_and_b32 s28, s28, 3\ns_lshl_b32 s29, s28, 1\ns_add_u32 s29, s29, s49\ns_lshr_b32 s61, s19, s29\ns_lshl_b32 s29, s29, 14\ns_add_u32 s29, s29, {MRF}\ns_and_b32 s53, s61, 1\ns_lshl_b32 s53, s53, 13\ns_add_u32 s53, s53, s29\ns_and_b32 s61, s61, 2\ns_lshl_b32 s61, s61, 12\ns_add_u32 s61, s61, s29\ns_add_u32 s61, s61, 8192\ns_lshl_b32 s28, s28, 14\ns_add_u32 s52, s28, s36\nv_mov_b32 v165, s61\nv_mov_b32 v20, s53\nv_cndmask_b32 v165, v165, v20, s[58:59]\nv_add_u32 v165, v165, v{FO}\nv_mov_b32 v0, -1\nv_mov_b32 v1, -1\nv_mov_b32 v2, -1\nv_mov_b32 v3, -1\ns_mov_b32 exec_hi, 0xff\nbuffer_store_dwordx4 v[0:3], v{FO}, s[8:11], s52 offen{LS}\nbuffer_store_dwordx4 v[0:3], v165, s[8:11], 0 offen sc1\ns_mov_b32 exec_hi, -1')
    a(f'{w1_}:\ns_cmp_le_u32 s14, {0 if "fin1" in OPT else 1}\ns_cbranch_scc0 {w0_}')
    a(f's_add_u32 s28, s16, 1\ns_and_b32 s28, s28, 3\ns_lshl_b32 s29, s28, 1\ns_add_u32 s29, s29, s49\ns_lshr_b32 s61, s19, s29\ns_lshl_b32 s29, s29, 14\ns_add_u32 s29, s29, {MRF}\ns_and_b32 s53, s61, 1\ns_lshl_b32 s53, s53, 13\ns_add_u32 s53, s53, s29\ns_and_b32 s61, s61, 2\ns_lshl_b32 s61, s61, 12\ns_add_u32 s61, s61, s29\ns_add_u32 s61, s61, 8192\ns_lshl_b32 s28, s28, 14\ns_add_u32 s52, s28, s36\nv_mov_b32 v165, s61\nv_mov_b32 v20, s53\nv_cndmask_b32 v165, v165, v20, {MK}\nv_add_u32 v165, v165, v{FX}')
    a(f'{w0_}:')
    gather(a,124,40,G01,G2,L16,prof,'v3' in OPT)
    ard=lambda k:a.lds(f'ds_read_b128 v[{4*k}:{4*k+3}], v{AR} offset:{1024*k}',('A',k))
    ard(0); ard(1); ard(2)
    def st3(regs,sreg,fl):
        o=[]
        for i in range(3):
            pre='s_mov_b32 exec_hi, 0\n' if i==2 else ''; post='\ns_mov_b32 exec_hi, -1' if i==2 else f'\ns_add_u32 {sreg}, {sreg}, 4096'
            r=regs(i); o.append(f'{pre}buffer_store_dwordx4 v[{r}:{r+3}], v{US}, s[8:11], {sreg} offen{fl}{post}')
        return o
    uxl=[]
    for n in range(4):
        for t,ar in enumerate((UA,UA2,167)):
            ld=f'buffer_load_dwordx4 v[{40+12*n+4*t}:{43+12*n+4*t}], v{ar}, s[8:11], s50 offen'
            uxl.append(f's_mov_b64 exec, s[40:41]\n{ld}\ns_mov_b64 exec, -1\ns_add_u32 s50, s50, 40960' if t==2 else ld)
    if 'noux' in OPT: uxl=['s_nop 0']*12
    pers=st3(lambda i:136+4*i,'s54',' sc1')
    nxt=[3]
    def mf(n,acc,A):
        toks=[A[1]]
        if n in ldsops: toks.append(('w',ldsops.index(n)))
        a.need(*toks)
        B=f'v[{stg[n]}:{stg[n]+7}]' if n in ldsops else wreg(regops.index(n),WV)
        a(f'v_smfmac_f32_16x16x64_bf16 v[{acc}:{acc+3}], v[{A[0]}:{A[0]+3}], {B}, v{IDX}')
        if n in ldsops and nxt[0]<NL: rdw(nxt[0]); nxt[0]+=1
    def post1(T):
        b=88+4*T
        return [f'v_pk_add_f32 v[{b}:{b+1}], v[{b}:{b+1}], v[{b+2}:{b+3}]\nv_cvt_pk_bf16_f32 v{b+1}, v{b}, v{b+1}',
          lambda:(a.lds(f'ds_write_b16 v{VW}, v{b+1} offset:{256*T}'),a.lds(f'ds_write_b16_d16_hi v{VW}, v{b+1} offset:{256*T+16}'))]
    pend=[]
    for i,n in enumerate(order[:30]):
        k,T=divmod(n,3)
        mf(n,88+4*T,(4*k,('A',k)))
        if i<7: ard(i+3)
        if i>=UX0 and (i-UX0)%UXS==0 and uxl: a(uxl.pop(0))
        if i in (11,20) and 'fine' in OPT: stamp(a,prof,0)
        if i>=12 and k==9: pend.append([i+8,post1(T)])
        if pend and i>=pend[0][0]:
            x=pend[0][1].pop(0); x() if callable(x) else a(x)
            if not pend[0][1]: pend.pop(0)
    stamp(a,prof,3)
    zero=lambda r:a(f'v_pk_mov_b32 v[{r}:{r+1}], 0, 0')
    zero(0); zero(2)
    for x in pend[0][1]: x() if callable(x) else a(x)
    zero(4); zero(6); zero(8)
    for x in pend[1][1]: x() if callable(x) else a(x)
    for r in range(10,40,2): zero(r)
    a('s_waitcnt lgkmcnt(0)\ns_barrier'); a.q=[]
    for k in range(3): a.lds(f'ds_read_b128 v[{124+4*k}:{127+4*k}], v{AR} offset:{VST+1024*k}',('V',k))
    stamp(a,prof,4)
    def post(T): return f'v_pk_add_f32 v[{4*T}:{4*T+1}], v[{4*T}:{4*T+1}], v[{4*T+2}:{4*T+3}]\nv_cvt_pk_bf16_f32 v{136+T}, v{4*T}, v{4*T+1}'
    sw1=lambda b:f'v_permlane32_swap_b32 v{b}, v{b+2}\nv_permlane32_swap_b32 v{b+1}, v{b+3}'
    sw2=lambda b:f'v_permlane16_swap_b32 v{b}, v{b+1}\nv_permlane16_swap_b32 v{b+2}, v{b+3}'
    ust=st3(lambda i:136+4*i,'s56',LS)
    for n in range(30,60):
        T,k2=divmod(n-30,3)
        mf(n,4*T,(124+4*k2,('V',k2)))
        if k2==0 and uxl and T<6: a(uxl.pop(0))
        if n in (39,49,59) and 'fine' in OPT: stamp(a,prof,0)
        if k2==2 and T>=3: a(post(T-3))
        if (T,k2)==(7,1): a(sw1(136))
        if (T,k2)==(8,0): a(sw2(136)); a(ust[0])
    a(post(7)); a('s_nop 0'); a(post(8)); a(sw1(140)); a(post(9)); a(sw2(140)); a(ust[1]); a(sw1(144)); a('s_nop 1'); a(sw2(144)); a(ust[2])
    assert not uxl
    stamp(a,prof,5)
    if 'ack' in OPT: a('s_waitcnt vmcnt(3)'); stamp(a,prof,5); a('s_waitcnt vmcnt(0)'); stamp(a,prof,5)
    last=a.lab('last')
    a(f's_cmp_eq_u32 s16, {NSTEP-1}\ns_cbranch_scc1 {last}')
    pu=a.lab('pu'); pp=a.lab('pp'); pc=a.lab('pc')
    def ldp(B=0):
        for n in range(2): a(f'buffer_load_dwordx4 v[{B+8*n}:{B+8*n+3}], v{RP}, s[8:11], s57 offen offset:{1280*n} sc1')
        a(f'buffer_load_dwordx4 v[{B+16}:{B+19}], v{RPM}, s[8:11], s57 offen sc1')
    def red(B):
        for n in range(5):
            for t in range(3):
                A=40+12*n+4*t if n<4 else 124+4*t
                C='0' if n==0 else f'v[{88+4*t}:{91+4*t}]'
                a(f'v_mfma_f32_16x16x32_bf16 v[{88+4*t}:{91+4*t}], v[{A}:{A+3}], v[{B+4*n}:{B+4*n+3}], {C}')
                if n in (0,2) and t==0:
                    for i in range(4): a(f'v_mov_b32_dpp v{B+4*n+4+i}, v{B+4*n+i} row_ror:8 row_mask:0xf bank_mask:0xf')
    a('s_waitcnt vmcnt(0)')
    a(f'{pu}:\nbuffer_load_dwordx4 v[124:127], v{RU}, s[8:11], s55 offen sc1\nbuffer_load_dwordx4 v[128:131], v{RU}, s[8:11], s55 offen offset:256 sc1\nbuffer_load_dwordx4 v[132:135], v{RU2}, s[8:11], s55 offen sc1')
    if 'sep' not in OPT: ldp()
    a('s_waitcnt vmcnt(%d)'%(0 if 'sep' in OPT else 3))
    check(a,[124,128,132],100,pu)
    stamp(a,prof,6)
    if 'dbl' in OPT:
        okA=a.lab('oa'); okB=a.lab('ob'); dn=a.lab('dn')
        ck=lambda B,l:a(f'v_max3_u32 v100, v{B}, v{B+8}, v{B+16}\nv_cmp_eq_u32 vcc, -1, v100\ns_cbranch_vccz {l}')
        a(f'{pp}:'); ldp(20); a('s_waitcnt vmcnt(3)'); ck(0,okA); ldp(0); a('s_waitcnt vmcnt(3)'); ck(20,okB)
        a(f's_sub_u32 s45, s45, 1\ns_cbranch_scc0 {pp}\ns_mov_b32 s45, 0\n{okB}:')
        ns=a.ns; stamp(a,prof,7); a.ns=ns; red(20); a(f's_branch {dn}\n{okA}:'); stamp(a,prof,7); red(0); a(f'{dn}:')
    else:
        a(('' if 'sep' in OPT else f's_branch {pc}\n')+f'{pp}:'); ldp(); a(f'{pc}:\ns_waitcnt vmcnt(0)')
        check(a,[0,8,16],20,pp)
        stamp(a,prof,7); red(0)
    a('s_mov_b64 exec, s[40:41]\ns_nop 4')
    for t in range(3): a(f'ds_write_b128 v{RW}, v[{88+4*t}:{91+4*t}] offset:{512*t}')
    a('s_mov_b64 exec, -1\ns_waitcnt vmcnt(0) lgkmcnt(0)\ns_barrier')
    stamp(a,prof,8)
    nx=a.lab('nx'); fl=a.lab('fl')
    ef=a.lab('ef'); efc=f's_mov_b64 exec, 1\ns_lshl_b32 s28, s13, 2\nv_mov_b32 v0, s28\ns_add_u32 s28, s16, 1\nv_mov_b32 v1, s28\nbuffer_store_dword v1, v0, s[8:11], s46 offen{LS}\ns_mov_b64 exec, -1'
    if 'fin1' in OPT:
        a(f's_cmp_eq_u32 s14, 0\ns_cbranch_scc0 {ef}')
        for w in range(4):
            for h in range(2): a(f'ds_read_b128 v[{8*w+4*h}:{8*w+4*h+3}], v{FI} offset:{1536*w+128*h}')
        pa=lambda d,x:a('\n'.join(f'v_pk_add_f32 v[{d+2*i}:{d+2*i+1}], v[{d+2*i}:{d+2*i+1}], v[{x+2*i}:{x+2*i+1}]' for i in range(4)))
        a('s_waitcnt lgkmcnt(4)'); pa(0,8); a('s_waitcnt lgkmcnt(2)'); pa(0,16); a('s_waitcnt lgkmcnt(0)'); pa(0,24)
        a('s_mov_b32 exec_hi, 0xff')
        for i in range(4): a(f'v_cvt_pk_bf16_f32 v{8+i}, v{2*i}, v{2*i+1}')
        a(f'buffer_store_dwordx4 v[8:11], v165, s[8:11], 0 offen sc1\nbuffer_store_dwordx4 v[8:11], v{FO}, s[8:11], s52 offen{LS}')
        a(f's_mov_b32 exec_hi, -1\ns_branch {nx}\n{ef}:\ns_cmp_eq_u32 s14, 1\ns_cbranch_scc0 {nx}\n'+('s_nop 15\n'*EFD)+efc)
    else:
        a(f's_cmp_ge_u32 s14, 2\ns_cbranch_scc1 {nx}')
        for w in range(4): a(f'ds_read_b128 v[{4*w}:{4*w+3}], v166 offset:{1536*w}')
        a('s_waitcnt lgkmcnt(2)\nv_pk_add_f32 v[0:1], v[0:1], v[4:5]\nv_pk_add_f32 v[2:3], v[2:3], v[6:7]\ns_waitcnt lgkmcnt(0)\nv_pk_add_f32 v[8:9], v[8:9], v[12:13]\nv_pk_add_f32 v[10:11], v[10:11], v[14:15]\nv_pk_add_f32 v[0:1], v[0:1], v[8:9]\nv_pk_add_f32 v[2:3], v[2:3], v[10:11]')
        a(f's_mov_b64 exec, s[62:63]\nv_cvt_pk_bf16_f32 v4, v0, v1\nv_cvt_pk_bf16_f32 v5, v2, v3\nbuffer_store_dwordx2 v[4:5], v165, s[8:11], 0 offen sc1\nbuffer_store_dwordx2 v[4:5], v{FI}, s[8:11], s52 offen{LS}\ns_mov_b64 exec, -1'.replace('s[62:63]','s[6:7]'))
    a(f'{nx}:')
    stamp_end(a,prof)
    a(f's_add_u32 s16, s16, 1\ns_branch {top}\n{last}:')
    a('s_add_u32 s46, s13, 16')
    prof_out(a,prof)
```

```python
from common import *
from chain import fbits
import math, chain
NS=5; SL=24576; SLW=32
XB=40960
SC=lambda:'' if 'nosc' in chain.OPT else ' sc1'
class VM:
    def __init__(s,a): s.a=a; s.q=[]
    def op(s,ins,tok=None): s.a(ins); s.q.append(tok)
    def need(s,*toks):
        idx=max([i for i,t in enumerate(s.q) if t in toks],default=-1)
        if idx<0: return
        k=len(s.q)-1-idx; assert k<=63
        s.a(f's_waitcnt vmcnt({k})'); s.q=s.q[idx+1:]
L16,XR,PD,GD,DD,UD,TE,TO,UE,UO,GT,DT,S1,S2,S3=232,235,236,236,236,239,240,241,242,243,240,240,244,245,246
LANE=20
FR0=192; NF=6
def spin(a,addr_s,cond,tmp=233,short=None):
    lp=a.lab('sp'); ok=a.lab('so'); sk=a.lab('ss')
    SLEEP=f's_sleep {SLW}' if not short else f's_sleep 2\ns_cmp_ge_u32 {short}, 61\ns_cbranch_scc1 {sk}\ns_sleep {SLW}\n{sk}:'
    a(f's_cmp_eq_u32 s14, 0\ns_cbranch_scc0 {ok}\nv_mov_b32 v{tmp}, 0\ns_mov_b64 exec, 1\n{lp}:\nbuffer_load_dword v{tmp+1}, v{tmp}, s[8:11], {addr_s} offen sc1\ns_waitcnt vmcnt(0)\nv_readfirstlane_b32 s29, v{tmp+1}\ns_cmp_ge_u32 s29, {cond}\ns_cbranch_scc1 {ok}\n{SLEEP}\ns_sub_u32 s45, s45, 1\ns_cbranch_scc0 {lp}\ns_mov_b32 s45, 0\n{ok}:\ns_mov_b64 exec, -1\ns_barrier')
def signal(a,addr_s,val=1):
    e=a.lab('sg')
    a(f's_waitcnt vmcnt(0)\ns_barrier\ns_cmp_eq_u32 s14, 0\ns_cbranch_scc0 {e}\ns_mov_b64 exec, 1\nv_mov_b32 v233, 0\nv_mov_b32 v234, {val}\nbuffer_atomic_add v234, v233, s[8:11], {addr_s} offen sc1\ns_mov_b64 exec, -1\n{e}:')
def run_stages(a,vm,stages,mid=None):
    n=len(stages)
    def issue(s):
        if 'nodma' in chain.OPT and s>=NS-1: return
        for x in stages[s]['dma'](s%NS): vm.op(x,('st',s))
    for s in range(min(NS-1,n)):
        issue(s)
        if mid: mid(s)
    flat=[(s,m) for s in range(n) for m in stages[s]['mm']]
    rd=[0]
    def prefetch(upto,cur):
        while rd[0]<len(flat) and rd[0]<upto and flat[rd[0]][0]<=cur+1:
            s,m=flat[rd[0]]; r=FR0+4*(rd[0]%NF)
            for P,x in enumerate(m['rd'] if 'notr' not in chain.OPT else []): a.lds(x(r+2*P,(s%NS)*SL),('f',rd[0]))
            rd[0]+=1
    vm.need(('st',0))
    i=0
    for s in range(n):
        if s+1<n: vm.need(('st',s+1))
        a('s_barrier')
        if s+NS-1<n: pend=[lambda s=s:issue(s+NS-1)]
        else: pend=[]
        for j,m in enumerate(stages[s]['mm']):
            prefetch(i+NF-1,s)
            if 'pre' in m: m['pre']()
            a.need(('f',i)); a(m['mf'](FR0+4*(i%NF)))
            if j==1 and pend: pend.pop()()
            for x in m.get('post',[]): x() if callable(x) else a(x)
            i+=1
def trd(base,off):
    def f(d,so):
        o=off+so
        return f'ds_read_b64_tr_b16 v[{d}:{d+1}], v{base} offset:{o}' if o<65536 else f'ds_read_b64_tr_b16 v[{d}:{d+1}], v{base+8} offset:{o-65536}'
    return f
def dma(vreg,srd_,soff,lds): return f's_add_u32 m0, s19, {lds}\ns_add_u32 s29, {soff[0]}, {soff[1]}\nbuffer_load_dwordx4 v{vreg}, s[{srd_}:{srd_+3}], s29 offen lds'
def proj_stage(st,srd_,sb,acc,first):
    d=lambda slot:[dma(PD+i%3,srd_,(sb,st*64*12288+(i//3)*8*12288),slot*SL+i*1024) for i in range(6)]
    mm=[]
    for ks in range(4):
        for t in range(6):
            b=TE if t%2==0 else TO
            C='0' if first and ks==0 else f'v[{acc+16*t}:{acc+16*t+15}]'
            mm.append(dict(rd=[trd(b,(16*ks+4*P)*384+64*t) for P in range(2)],mf=lambda f,t=t,C=C,k=4*st+ks:f'v_mfma_f32_32x32x16_bf16 v[{acc+16*t}:{acc+16*t+15}], v[{f}:{f+3}], a[{4*k}:{4*k+3}], {C}'))
    return dict(dma=d,mm=mm)
def load_xn(a,vm):
    a(f's_lshl_b32 s48, s50, 2\ns_add_u32 s48, s48, s14\ns_mul_i32 s48, s48, {XB}')
    def part(lo,hi):
        for k in range(lo,hi):
            vm.op(f'buffer_load_dwordx4 a[{4*k}:{4*k+3}], v{L16}, s[8:11], s48 offen offset:{(k%4)*1024}',('x',k))
            if k%4==3: a('s_add_u32 s48, s48, 4096')
    return part
def xn_hooks(st,part,vm):
    for s in range(10): st[s]['mm'][0]['pre']=lambda s=s:vm.need(('x',4*s+3))
    for s in range(6): st[s]['mm'][8].setdefault('post',[]).append(lambda s=s:part(16+4*s,20+4*s))
    return lambda s:part(4*s,4*s+4)
def cvt_tile(acc,dst): return [f'v_cvt_pk_bf16_f32 v{dst+i}, v{acc+2*i}, v{acc+2*i+1}' for i in range(8)]
def task_QK(a):
    vm=VM(a); a('s_mul_i32 s52, s51, 384')
    part=load_xn(a,vm)
    st=[proj_stage(s,20,'s52',0,s==0) for s in range(10)]+[proj_stage(s,24,'s52',96,s==0) for s in range(10)]
    mid=xn_hooks(st,part,vm)
    a(f's_lshl_b32 s53, s50, 2\ns_add_u32 s53, s53, s14\ns_lshl_b32 s53, s53, 5\ns_add_u32 s53, s53, s51\ns_mul_i32 s53, s53, 12288\ns_add_u32 s54, s53, {KX}\ns_add_u32 s53, s53, {QX}')
    def epi(acc,t,areg,sreg):
        o=cvt_tile(acc+16*t,216+8*(t%2))
        for c in range(2): o.append(lambda c=c:vm.op(f'buffer_store_dwordx4 v[{216+8*(t%2)+4*c}:{219+8*(t%2)+4*c}], v{areg}, s[8:11], {sreg} offen offset:{512*c}{SC()}'))
        o.append(f's_add_u32 {sreg}, {sreg}, 1024'); return o
    for t in range(6):
        e=epi(0,t,S1,'s53')
        for q in range(4): st[10+t]['mm'][4+4*q].setdefault('post',[]).extend(e[3*q:3*q+3])
    run_stages(a,vm,st,mid)
    a('s_nop 15\ns_nop 3')
    for t in range(6):
        for x in epi(96,t,S2,'s54'): x() if callable(x) else a(x)
    a(f's_lshl_b32 s28, s50, 5\ns_add_u32 s28, s28, s51\ns_lshl_b32 s28, s28, 2\ns_add_u32 s28, s28, {F_QK}'); signal(a,'s28',2)
def task_P(a):
    vm=VM(a); a('s_mul_i32 s52, s51, 384\ns_cmp_eq_u32 s49, 0\ns_cselect_b32 s64, s20, s24\ns_cselect_b32 s65, s21, s25\ns_mov_b32 s66, 0x780000\ns_mov_b32 s67, 0x20000')
    a(f's_mov_b32 s28, {QX}\ns_cselect_b32 s54, s28, {KX}\ns_cselect_b64 vcc, -1, 0\nv_cndmask_b32 v{S1}, v{S2}, v{S1}, vcc')
    part=load_xn(a,vm)
    st=[proj_stage(s,64,'s52',0,s==0) for s in range(10)]
    mid=xn_hooks(st,part,vm)
    a(f's_lshl_b32 s53, s50, 2\ns_add_u32 s53, s53, s14\ns_lshl_b32 s53, s53, 5\ns_add_u32 s53, s53, s51\ns_mul_i32 s53, s53, 12288\ns_add_u32 s53, s53, s54')
    run_stages(a,vm,st,mid)
    a('s_nop 15\ns_nop 3')
    for t in range(6):
        for x in cvt_tile(16*t,216+8*(t%2)): a(x)
        for c in range(2): a(f'buffer_store_dwordx4 v[{216+8*(t%2)+4*c}:{219+8*(t%2)+4*c}], v{S1}, s[8:11], s53 offen offset:{512*c} sc1')
        a('s_add_u32 s53, s53, 1024')
    a(f's_lshl_b32 s28, s50, 5\ns_add_u32 s28, s28, s51\ns_lshl_b32 s28, s28, 2\ns_add_u32 s28, s28, {F_QK}'); signal(a,'s28',1)
def task_VU(a,nu=10):
    vm=VM(a); a('s_mul_i32 s52, s51, 384\ns_mul_i32 s55, s51, 245760')
    if nu<10: a('s_mul_i32 s28, s49, 640\ns_add_u32 s55, s55, s28')
    part=load_xn(a,vm)
    st=[proj_stage(s,28+4,'s52',0,s==0) for s in range(10)]
    mid=xn_hooks(st,part,vm)
    a(f's_lshl_b32 s53, s50, 2\ns_add_u32 s53, s53, s14\ns_lshl_b32 s53, s53, 5\ns_add_u32 s53, s53, s51\ns_mul_i32 s53, s53, 40960\ns_add_u32 s53, s53, {UX}')
    if nu<10: a('s_mul_i32 s28, s49, 20480\ns_add_u32 s53, s53, s28')
    def epi(acc):
        o=[]
        for ct in range(2):
            o+=cvt_tile(acc+16*ct,216+8*ct)
            for c in range(2): o.append(lambda c=c,ct=ct:vm.op(f'buffer_store_dwordx4 v[{216+8*ct+4*c}:{219+8*ct+4*c}], v{S1}, s[8:11], s53 offen offset:{2048*ct+1024*c}{SC()}'))
        o.append('s_add_u32 s53, s53, 4096'); return o
    for s in range(nu):
        acc=(s%2)*32
        d=lambda slot,s=s:[dma(UD,36,('s55',s*128+i*8*1280),slot*SL+i*1024) for i in range(6)]
        mm=[]
        for k in range(12):
            for ct in range(2):
                C='0' if k==0 else f'v[{acc+16*ct}:{acc+16*ct+15}]'
                mm.append(dict(rd=[trd(UE if ct==0 else UO,(16*k+8*P)*128+64*ct) for P in range(2)],mf=lambda f,ct=ct,C=C,k=k,acc=acc:f'v_mfma_f32_32x32x16_bf16 v[{acc+16*ct}:{acc+16*ct+15}], v[{96+4*k}:{99+4*k}], v[{f}:{f+3}], {C}'))
        if s==0:
            def cv():
                a('s_nop 15')
                for t in range(6):
                    for x in cvt_tile(16*t,96+8*t): a(x)
                a('s_nop 1')
            mm[0]['pre']=cv
        else:
            e=epi(32-acc)
            for q in range(7): mm[6+2*q].setdefault('post',[]).extend(e[3*q:3*q+3])
        st.append(dict(dma=d,mm=mm))
    run_stages(a,vm,st,mid)
    a('s_nop 15\ns_nop 3')
    for x in epi(((nu-1)%2)*32): x() if callable(x) else a(x)
    a(f's_lshl_b32 s28, s50, 5\ns_add_u32 s28, s28, s51\ns_lshl_b32 s28, s28, 2\ns_add_u32 s28, s28, {F_VU}'); signal(a,'s28',2 if nu==10 else 1)
def task_GLU(a):
    vm=VM(a); a('s_mul_i32 s52, s51, 192')
    part=load_xn(a,vm)
    st=[]
    for s in range(10):
        d=lambda slot,s=s:[dma(GD+i%3,40,('s52',s*64*3072+(i//3)*16*3072),slot*SL+i*1024) for i in range(6)]
        mm=[]
        for ks in range(4):
            for t in range(6):
                C='0' if s==0 and ks==0 else f'v[{16*t}:{16*t+15}]'
                mm.append(dict(rd=[trd(GT,(16*ks+4*P)*192+64*(t%3)+12288*(t//3)) for P in range(2)],mf=lambda f,t=t,C=C,k=4*s+ks:f'v_mfma_f32_32x32x16_bf16 v[{16*t}:{16*t+15}], v[{f}:{f+3}], a[{4*k}:{4*k+3}], {C}'))
        st.append(dict(dma=d,mm=mm))
    mid=xn_hooks(st,part,vm)
    run_stages(a,vm,st,mid)
    a(f's_lshl_b32 s53, s50, 2\ns_add_u32 s53, s53, s14\ns_mul_i32 s53, s53, {96*1024}\ns_mul_i32 s28, s51, 6144\ns_add_u32 s53, s53, s28\ns_add_u32 s53, s53, {HB}\ns_mov_b32 s28, {hex(fbits(-math.log2(math.e)))}\ns_nop 15')
    for t in range(3):
        for i in range(16): a(f'v_mul_f32 v{16*t+i}, s28, v{16*t+i}')
        for i in range(16): a(f'v_exp_f32 v{16*t+i}, v{16*t+i}')
        for i in range(16): a(f'v_add_f32 v{16*t+i}, 1.0, v{16*t+i}')
        for i in range(16): a(f'v_rcp_f32 v{16*t+i}, v{16*t+i}')
        for i in range(16): a(f'v_mul_f32 v{16*t+i}, v{16*t+i}, v{48+16*t+i}')
        for x in cvt_tile(16*t,96+8*t): a(x)
        for c in range(2): a(f'buffer_store_dwordx4 v[{96+8*t+4*c}:{99+8*t+4*c}], v{L16}, s[8:11], s53 offen offset:{1024*c} sc1')
        a('s_add_u32 s53, s53, 2048')
    a(f's_lshl_b32 s28, s50, 7\ns_add_u32 s28, s28, {F_H}'); signal(a,'s28')
def task_DOWN(a):
    a(f's_lshl_b32 s28, s50, 7\ns_add_u32 s28, s28, {F_H}'); spin(a,'s28',16)
    vm=VM(a); a(f's_lshl_b32 s52, s51, 8\ns_lshl_b32 s53, s50, 2\ns_add_u32 s53, s53, s14\ns_mul_i32 s54, s53, {96*1024}\ns_add_u32 s54, s54, {HB}')
    def ldh(s):
        for k in range(6):
            vm.op(f'buffer_load_dwordx4 a[{24*(s%6)+4*k}:{24*(s%6)+4*k+3}], v{L16}, s[8:11], s54 offen offset:{(k%3)*1024}',('h',s))
            if k%3==2: a('s_add_u32 s54, s54, 3072')
    a(f's_mul_i32 s55, s53, {32*1280}\ns_add_u32 s55, s55, s52')
    for ct in range(4):
        for q in range(4): vm.op(f'buffer_load_dwordx2 v[{64+8*ct+2*q}:{65+8*ct+2*q}], v{XR}, s[56:59], s55 offen offset:{64*ct+16*q}','xr')
    for s in range(4): ldh(s)
    st=[]
    for s in range(16):
        d=lambda slot,s=s:[dma(DD,60,('s52',s*96*1280+i*4*1280),slot*SL+i*1024) for i in range(6)]
        mm=[]
        for k in range(6):
            for ct in range(4):
                C='0' if s==0 and k==0 else f'v[{16*ct}:{16*ct+15}]'
                mm.append(dict(rd=[trd(DT+ct,(16*k+8*P)*256) for P in range(2)],mf=lambda f,ct=ct,C=C,k=k,s=s:f'v_mfma_f32_32x32x16_bf16 v[{16*ct}:{16*ct+15}], v[{f}:{f+3}], a[{24*(s%6)+4*k}:{24*(s%6)+4*k+3}], {C}'))
        mm[0]['pre']=lambda s=s:vm.need(('h',s))
        if s+4<16: mm[8]['post']=[lambda s=s:ldh(s+4)]
        st.append(dict(dma=d,mm=mm))
    run_stages(a,vm,st)
    a(f's_mul_i32 s53, s53, {20*4096}\ns_lshl_b32 s28, s51, 14\ns_add_u32 s53, s53, s28\ns_add_u32 s53, s53, {Y}\ns_nop 15')
    for ct in range(4):
        for q in range(4):
            x=64+8*ct+2*q; b=16*ct+4*q
            a(f'v_lshlrev_b32 v96, 16, v{x}\nv_and_b32 v97, 0xffff0000, v{x}\nv_lshlrev_b32 v98, 16, v{x+1}\nv_and_b32 v99, 0xffff0000, v{x+1}\nv_pk_add_f32 v[{b}:{b+1}], v[{b}:{b+1}], v[96:97]\nv_pk_add_f32 v[{b+2}:{b+3}], v[{b+2}:{b+3}], v[98:99]\nbuffer_store_dwordx4 v[{b}:{b+3}], v{L16}, s[8:11], s53 offen offset:{1024*q} sc1')
        a('s_add_u32 s53, s53, 4096')
    a(f's_mul_i32 s28, s50, 5\ns_add_u32 s28, s28, s51\ns_lshl_b32 s28, s28, 2\ns_add_u32 s28, s28, {F_Y}'); signal(a,'s28')
def task_FIN(a):
    a(f's_lshr_b32 s28, s50, 2\ns_mul_i32 s28, s28, 5\ns_lshr_b32 s52, s51, 2\ns_add_u32 s28, s28, s52\ns_lshl_b32 s28, s28, 2\ns_add_u32 s28, s28, {F_Y}'); spin(a,'s28',1)
    a(f's_lshl_b32 s52, s50, 5\ns_lshl_b32 s28, s14, 3\ns_add_u32 s52, s52, s28')
    a(f's_mul_i32 s53, s50, 20\ns_add_u32 s53, s53, s51\ns_lshl_b32 s53, s53, 12\ns_lshl_b32 s28, s14, 10\ns_add_u32 s53, s53, s28\ns_add_u32 s53, s53, {Y}\nbuffer_load_dwordx4 v[180:183], v{L16}, s[8:11], s53 offen')
    a(f's_sub_u32 s28, s50, 2\ns_max_i32 s28, s28, 0\ns_lshl_b32 s28, s28, 7\ns_add_u32 s28, s28, {F_SEG}'); spin(a,'s28',32)
    a(f's_mul_i32 s53, s52, 40960\ns_lshl_b32 s28, s51, 11\ns_add_u32 s53, s53, s28\ns_add_u32 s53, s53, {UX}\ns_mul_i32 s54, s52, 2560\ns_add_u32 s54, s54, {PX}\ns_mul_i32 s55, s52, 10240\ns_lshl_b32 s28, s51, 9\ns_add_u32 s55, s55, s28\ns_add_u32 s55, s55, {UM}')
    for h in range(8):
        for c in range(2): a(f'buffer_load_dwordx4 v[{16+16*h+8*c}:{19+16*h+8*c}], v{S1}, s[8:11], s53 offen offset:{1024*c}')
        a('s_add_u32 s53, s53, 40960')
    a(f's_lshl_b32 s28, s50, 7\ns_add_u32 s28, s28, {F_SEG}'); spin(a,'s28',32,short='s50')
    for h in range(8):
        for c in range(2): a(f'buffer_load_dwordx4 v[{20+16*h+8*c}:{23+16*h+8*c}], v{S1}, s[8:11], s54 offen offset:{1024*c}')
        if h%2==0: a(f'buffer_load_dwordx4 v[{144+4*h}:{147+4*h}], v{S2}, s[8:11], s55 offen\nbuffer_load_dwordx4 v[{148+4*h}:{151+4*h}], v{S3}, s[8:11], s54 offen offset:2048\ns_add_u32 s55, s55, 20480')
        a('s_add_u32 s54, s54, 2560')
    left=24; first=True
    for h in range(8):
        seq=[(16+16*h,20+16*h),(24+16*h,28+16*h)]+([(144+4*h,148+4*h)] if h%2==0 else [])
        for (A,B) in seq:
            left-=(2 if A>=144 else 1); a(f's_waitcnt vmcnt({left})\nv_mfma_f32_32x32x16_bf16 v[0:15], v[{A}:{A+3}], v[{B}:{B+3}], {"0" if first else "v[0:15]"}'); first=False
    a(f's_lshl_b32 s28, s14, 12\nv_add_u32 v184, s28, v{L16}\ns_lshl_b32 s28, s14, 10\nv_add_u32 v185, s28, v{L16}\ns_nop 15')
    for q in range(4): a(f'ds_write_b128 v184, v[{4*q}:{4*q+3}] offset:{1024*q}')
    a('s_waitcnt lgkmcnt(0)\ns_barrier')
    for w in range(4): a(f'ds_read_b128 v[{16+4*w}:{19+4*w}], v185 offset:{4096*w}')
    a(f's_mul_i32 s53, s50, {32*1280}\ns_lshl_b32 s28, s51, 6\ns_add_u32 s53, s53, s28\ns_lshl_b32 s28, s14, 4\ns_add_u32 s53, s53, s28\ns_waitcnt lgkmcnt(0)')
    for w in range(4): a(f'v_pk_add_f32 v[180:181], v[180:181], v[{16+4*w}:{17+4*w}]\nv_pk_add_f32 v[182:183], v[182:183], v[{18+4*w}:{19+4*w}]')
    a('v_cvt_pk_bf16_f32 v180, v180, v181\nv_cvt_pk_bf16_f32 v181, v182, v183\nbuffer_store_dwordx2 v[180:181], v235, s[4:7], s53 offen\ns_barrier')
def gen_worker(a,first=0,last=1488+1280,nw=192):
    a('s_load_dwordx8 s[64:71], s[0:1], 16\ns_load_dwordx4 s[72:75], s[0:1], 64\ns_load_dwordx4 s[76:79], s[0:1], 80\ns_load_dwordx2 s[80:81], s[0:1], 0\ns_waitcnt lgkmcnt(0)')
    srd(a,20,64,7864320); srd(a,24,66,7864320); srd(a,32,68,7864320); srd(a,36,70,7864320)
    a('s_cmp_lt_u32 s14, 2\ns_cselect_b32 s72, s72, s74\ns_cselect_b32 s73, s73, s75'); srd(a,40,72,640*3072); srd(a,60,76,1536*1280); srd(a,4,78,2048*1280); srd(a,56,80,2048*1280)
    a(f'''s_mov_b32 s45, 2000000
    s_mul_i32 s19, s14, 6144
    v_and_b32 v{LANE}, 63, v0
    v_lshlrev_b32 v{L16}, 4, v{LANE}
    v_and_b32 v1, 31, v{LANE}
    v_lshrrev_b32 v2, 5, v{LANE}
    v_bfe_u32 v3, v{LANE}, 2, 2
    v_bfe_u32 v4, v{LANE}, 4, 1
    v_and_b32 v5, 3, v{LANE}
    v_lshlrev_b32 v5, 3, v5
    v_lshl_add_u32 v5, v4, 5, v5
    v_bfe_u32 v6, v{LANE}, 3, 1
    v_lshlrev_b32 v6, 6, v6
    v_lshl_add_u32 v7, v2, 3, v3
    v_mul_u32_u24 v8, 384, v7
    v_add_u32 v8, v8, v5
    v_add_u32 v30, v8, v6
    v_sub_u32 v31, v8, v6
    v_mul_u32_u24 v8, 192, v7
    v_add_u32 v32, v8, v5
    v_lshl_add_u32 v7, v2, 2, v3
    v_lshl_add_u32 v8, v7, 7, v5
    v_add_u32 v33, v8, v6
    v_sub_u32 v34, v8, v6
    v_lshl_add_u32 v8, v7, 8, v5''')
    for ct in range(4): a(f'v_xor_b32 v9, {ct}, v3\nv_lshl_add_u32 v{40+ct}, v9, 6, v8')
    a(f'''v_lshlrev_b32 v8, 5, v1
    v_lshl_add_u32 v52, v2, 4, v8
    v_mul_u32_u24 v8, 10240, v2
    v_lshl_add_u32 v53, v1, 4, v8
    v_mul_u32_u24 v8, 2560, v2
    v_lshl_add_u32 v54, v1, 4, v8
    v_mul_u32_u24 v8, 1280, v1
    v_lshl_add_u32 v55, v2, 3, v8
    v_lshrrev_b32 v8, 4, v1
    v_mul_u32_u24 v9, 6144, v8
    v_and_b32 v10, 15, v1
    v_lshl_add_u32 v9, v10, 4, v9
    v_lshl_add_u32 v56, v2, 8, v9
    v_bfe_u32 v9, v1, 3, 1
    v_mul_u32_u24 v9, 6144, v9
    v_lshl_add_u32 v9, v8, 7, v9
    v_and_b32 v10, 7, v1
    v_lshl_add_u32 v9, v10, 4, v9
    v_lshl_add_u32 v57, v2, 8, v9''')
    for i in range(3):
        a(f'''v_add_u32 v8, {64*i}, v{LANE}
        v_mul_u32_u24 v9, 0xaaab, v8
        v_lshrrev_b32 v11, 19, v9
        v_lshrrev_b32 v9, 20, v9
        v_mul_u32_u24 v10, 24, v9
        v_sub_u32 v10, v8, v10
        v_bfe_u32 v12, v9, 1, 1
        v_lshlrev_b32 v12, 2, v12
        v_xor_b32 v10, v10, v12
        s_lshl_b32 s28, s14, 4
        v_add_u32 v9, s28, v9
        v_mul_u32_u24 v9, 12288, v9
        v_lshl_add_u32 v{44+i}, v10, 4, v9
        v_mul_u32_u24 v10, 12, v11
        v_sub_u32 v10, v8, v10
        s_and_b32 s28, s14, 1
        s_lshl_b32 s28, s28, 5
        v_add_u32 v11, s28, v11
        v_mul_u32_u24 v11, 3072, v11
        v_lshl_add_u32 v{48+i}, v10, 4, v11''')
    a(f'''v_lshrrev_b32 v8, 3, v{LANE}
    v_and_b32 v9, 7, v{LANE}
    v_bfe_u32 v10, v8, 1, 1
    v_lshlrev_b32 v10, 2, v10
    v_xor_b32 v9, v9, v10
    s_mul_i32 s28, s14, 48
    v_add_u32 v8, s28, v8
    v_mul_u32_u24 v8, 1280, v8
    v_lshl_add_u32 v35, v9, 4, v8
    v_lshrrev_b32 v8, 4, v{LANE}
    v_and_b32 v9, 15, v{LANE}
    v_lshlrev_b32 v10, 2, v8
    v_xor_b32 v9, v9, v10
    s_mul_i32 s28, s14, 24
    v_add_u32 v8, s28, v8
    v_mul_u32_u24 v8, 1280, v8
    v_lshl_add_u32 v36, v9, 4, v8
    ''')
    for r in range(30,58): a(f'v_accvgpr_write_b32 a{170+r}, v{r}')
    def get(*pairs):
        for d,r in pairs: a(f'v_accvgpr_read_b32 v{d}, a{170+r}')
        for d,r in pairs:
            if 240<=d<244: a(f'v_add_u32 v{d+8}, 0x10000, v{d}')
    a(f'''s_add_u32 s18, s17, {first}
    wk_loop:
    s_cmp_ge_u32 s18, {last}
    s_cbranch_scc1 wk_done
    s_cmp_ge_u32 s18, 1488
    s_cbranch_scc0 wk_n4
    s_sub_u32 s28, s18, 1488
    s_mul_i32 s50, s28, 0xccd
    s_lshr_b32 s50, s50, 16
    s_mul_i32 s51, s50, 20
    s_sub_u32 s51, s28, s51''')
    get((XR,55),(S1,52),(S2,53),(S3,54)); task_FIN(a)
    a('wk_next:')
    if 'steps' in chain.OPT: a(f's_memrealtime s[2:3]\ns_waitcnt lgkmcnt(0)\ns_lshl_b32 s28, s18, 2\ns_add_u32 s28, s28, {PROF+0x50000}\nv_mov_b32 v233, 0\nv_mov_b32 v234, s2\nbuffer_store_dword v234, v233, s[8:11], s28 offen')
    a(f'''    s_add_u32 s18, s18, {nw}
    s_branch wk_loop
    wk_done:
    s_endpgm
    wk_n4:
    s_cmp_ge_u32 s18, 1408
    s_cbranch_scc0 wk_n3
    s_sub_u32 s28, s18, 1408
    s_lshr_b32 s51, s28, 4
    s_and_b32 s50, s28, 15''')
    get((XR,55),(DD,36),*[(DT+i,40+i) for i in range(4)]); task_DOWN(a)
    a('''s_branch wk_next
    wk_n3:
    s_cmp_ge_u32 s18, 1152
    s_cbranch_scc0 wk_n2
    s_sub_u32 s28, s18, 1152
    s_lshr_b32 s51, s28, 4
    s_and_b32 s50, s28, 15''')
    get((GT,32),*[(GD+i,48+i) for i in range(3)]); task_GLU(a)
    a('''s_branch wk_next
    wk_n2:
    s_sub_u32 s48, s18, 384
    s_mul_i32 s28, s48, 0x5556
    s_lshr_b32 s28, s28, 16
    s_mul_i32 s29, s28, 3
    s_sub_u32 s29, s48, s29
    s_lshr_b32 s50, s28, 6
    s_mul_i32 s50, s50, 3
    s_add_u32 s50, s50, s29
    s_add_u32 s50, s50, 4
    s_and_b32 s49, s28, 63
    s_mul_i32 s28, s17, 0x2aab
    s_lshr_b32 s28, s28, 16
    s_mul_i32 s29, s28, 6
    s_sub_u32 s48, s17, s29
    s_lshl_b32 s28, s28, 1
    s_and_b32 s29, s48, 1
    s_add_u32 s29, s29, s28
    s_cmp_lt_u32 s18, 192
    s_cselect_b32 s28, 1, 3
    s_cmp_lt_u32 s18, 384
    s_cselect_b32 s50, s28, s50
    s_cselect_b32 s49, s29, s49
    s_cselect_b32 s48, s48, 7
    s_lshr_b32 s51, s49, 1''')
    get((TE,30),(TO,31),(UE,33),(UO,34),(UD,35),(S1,56),(S2,57),*[(PD+i,44+i) for i in range(3)])
    a('s_cmp_lt_u32 s48, 4\ns_cbranch_scc1 wk_sp\ns_bitcmp1_b32 s49, 0\ns_cbranch_scc1 wk_vu'); task_QK(a)
    a('s_branch wk_next\nwk_vu:'); get((S1,52)); task_VU(a)
    a('s_branch wk_next\nwk_sp:\ns_sub_u32 s50, s50, 1\ns_and_b32 s49, s48, 1\ns_bitcmp1_b32 s48, 1\ns_cbranch_scc1 wk_sv'); task_P(a)
    a('s_branch wk_next\nwk_sv:'); get((S1,52)); task_VU(a,5)
    a('s_branch wk_next')
```

```python
from common import *
import chain, worker
def gen_init(a):
    a('s_load_dwordx4 s[4:7], s[0:1], 0\ns_waitcnt lgkmcnt(0)')
    srd(a,16,4,2048*1280); srd(a,20,6,10240)
    a(f'''s_sub_u32 s24, s2, 16
    s_cmp_lt_u32 s24, 32
    s_cbranch_scc0 init_np
    s_cmp_eq_u32 s14, 3
    s_cbranch_scc0 init_np
    s_lshl_b32 s25, s24, 13
    s_add_u32 s25, s25, {MRF}
    s_bfe_u32 s26, s24, 0x20002
    s_cmp_eq_u32 s26, 0
    s_cselect_b32 s26, 0, -1
    v_mov_b32 v2, 0x1f80
    v_mov_b32 v4, s26
    s_mov_b32 s30, -1
    s_mov_b64 exec, 1''')
    for r in range(2):
        a(f'buffer_store_dword v4, v2, s[8:11], s25 offen sc1\ns_waitcnt vmcnt(0)\ns_memtime s[26:27]\ns_waitcnt lgkmcnt(0)\nbuffer_load_dword v3, v2, s[8:11], s25 offen sc1\ns_waitcnt vmcnt(0)\ns_memtime s[28:29]\ns_waitcnt lgkmcnt(0)\ns_sub_u32 s26, s28, s26\ns_min_u32 s30, s30, s26')
    a(f'''s_getreg_b32 s26, hwreg(HW_REG_XCC_ID, 2, 1)
    s_sub_u32 s27, 1060, s30
    s_cmp_eq_u32 s26, 1
    s_cselect_b32 s30, s27, s30
    s_lshl_b32 s24, s24, 2
    s_add_u32 s24, s24, {FLAGS+0x10000}
    v_mov_b32 v2, 0
    v_mov_b32 v3, s30
    buffer_store_dword v3, v2, s[8:11], s24 offen sc1
    s_mov_b64 exec, -1
    init_np:''')
    a('''v_and_b32 v2, 31, v0
    v_lshrrev_b32 v3, 5, v0
    s_lshl_b32 s3, s2, 3
    v_add_u32 v3, s3, v3
    v_mul_u32_u24 v4, 1280, v3
    v_lshl_add_u32 v4, v2, 3, v4''')
    for i in range(5): a(f'buffer_load_dwordx2 v[{10+2*i}:{11+2*i}], v4, s[16:19], 0 offen offset:{256*i}')
    a(f'''v_lshlrev_b32 v5, 4, v0
    v_mov_b32 v40, -1
    v_mov_b32 v41, -1
    v_mov_b32 v42, -1
    v_mov_b32 v43, -1
    v_min_u32 v6, 2544, v5
    s_lshr_b32 s24, s2, 7
    s_lshl_b32 s24, s24, 20
    s_bfe_u32 s25, s2, 0x10006
    s_lshl_b32 s25, s25, 18
    s_add_u32 s24, s24, s25
    s_and_b32 s25, s2, 63
    s_mul_i32 s25, s25, 2560
    s_add_u32 s24, s24, s25
    s_add_u32 s24, s24, {UR}
    buffer_store_dwordx4 v[40:43], v6, s[8:11], s24 offen sc1
    s_sub_u32 s24, s2, 64
    s_cmp_lt_u32 s24, 24
    s_cbranch_scc0 init_p0
    s_and_b32 s25, s24, 3
    s_mul_i32 s25, s25, 2560
    s_bfe_u32 s26, s24, 0x10002
    s_lshl_b32 s26, s26, 16
    s_add_u32 s25, s25, s26
    s_lshr_b32 s24, s24, 3
    s_mov_b32 s26, {PR}
    s_cmp_eq_u32 s24, 0
    s_cselect_b32 s26, {MLOC+0x4000}, s26
    s_cmp_eq_u32 s24, 2
    s_cselect_b32 s26, {PR+0x4000}, s26
    s_add_u32 s25, s25, s26
    buffer_store_dwordx4 v[40:43], v6, s[8:11], s25 offen sc1
    init_p0:
    s_bitcmp1_b32 s2, 6
    s_cbranch_scc1 init_p1''')
    a(f'''s_bfe_u32 s25, s2, 0x20005
    s_cmp_eq_u32 s25, 0
    s_cselect_b32 s25, 0, -1
    v_mov_b32 v44, s25
    v_mov_b32 v45, s25
    v_mov_b32 v46, s25
    v_mov_b32 v47, s25
    s_lshl_b32 s24, s2, 10
    s_add_u32 s24, s24, {MRF}
    v_and_b32 v6, 0x3ff, v5
    buffer_store_dwordx4 v[44:47], v6, s[8:11], s24 offen sc1
    s_nop 1
    init_p1:''')
    a(f'''s_cmp_ge_u32 s2, 8
    s_cbranch_scc1 init_ln
    v_mov_b32 v44, 0
    v_mov_b32 v45, 0
    v_mov_b32 v46, 0
    v_mov_b32 v47, 0
    s_cmp_ge_u32 s2, 4
    s_cbranch_scc1 init_fl
    s_lshl_b32 s24, s2, 16
    s_add_u32 s24, s24, {MLOC}''')
    for i in range(3):
        a(f'''v_add_u32 v6, {256*i}, v0
        v_min_u32 v6, 639, v6
        v_and_b32 v7, 7, v6
        v_lshrrev_b32 v8, 3, v6
        v_mul_u32_u24 v7, 1280, v7
        v_lshl_add_u32 v7, v8, 4, v7
        v_lshlrev_b32 v6, 4, v6
        s_cmp_ge_u32 s2, 2
        s_cbranch_scc1 init_z{i}
        buffer_load_dwordx4 v[44:47], v7, s[20:23], 0 offen
        s_waitcnt vmcnt(0)
        init_z{i}:
        buffer_store_dwordx4 v[44:47], v6, s[8:11], s24 offen sc1
        s_nop 1''')
    a(f'''s_branch init_ln
    init_fl:
    s_sub_u32 s24, s2, 4
    s_lshl_b32 s24, s24, 14
    s_add_u32 s24, s24, {FLAGS}''')
    for i in range(4): a(f'buffer_store_dwordx4 v[44:47], v5, s[8:11], s24 offen sc1\ns_add_u32 s24, s24, 4096')
    a('init_ln:\ns_waitcnt vmcnt(0)')
    for i in range(10): a(f'v_lshlrev_b32 v{20+2*i}, 16, v{10+i}\nv_and_b32 v{21+2*i}, 0xffff0000, v{10+i}')
    def red(r):
        for sh in (1,2,4,8): a(f's_nop 1\nv_add_f32_dpp v{r}, v{r}, v{r} row_ror:{sh} row_mask:0xf bank_mask:0xf')
        a(f'v_mov_b32 v9, v{r}\ns_nop 1\nv_permlane16_swap_b32 v{r}, v9\ns_nop 1\nv_add_f32 v{r}, v{r}, v9')
    def rnd(r): a(f'v_cvt_pk_bf16_f32 v{r}, v{r}, v{r}\nv_and_b32 v{r}, 0xffff0000, v{r}')
    a('v_add_f32 v6, v20, v21')
    for i in range(2,20): a(f'v_add_f32 v6, v6, v{20+i}')
    red(6); a(f'v_mul_f32 v6, {hex(chain.fbits(1/640))}, v6')
    a('v_sub_f32 v8, v20, v6\nv_mul_f32 v7, v8, v8')
    for i in range(1,20): a(f'v_sub_f32 v8, v{20+i}, v6\nv_fmac_f32 v7, v8, v8')
    red(7); a(f'v_mul_f32 v7, {hex(chain.fbits(1/640))}, v7')
    rnd(6); rnd(7); a(f'v_add_f32 v7, {hex(chain.fbits(1e-5))}, v7'); rnd(7); a('v_sqrt_f32 v7, v7\ns_nop 0'); rnd(7); a('v_rcp_f32 v7, v7')
    for i in range(10):
        a(f'v_sub_f32 v{20+2*i}, v{20+2*i}, v6\nv_sub_f32 v{21+2*i}, v{21+2*i}, v6\nv_cvt_pk_bf16_f32 v8, v{20+2*i}, v{21+2*i}\nv_lshlrev_b32 v{20+2*i}, 16, v8\nv_and_b32 v{21+2*i}, 0xffff0000, v8\nv_mul_f32 v{20+2*i}, v{20+2*i}, v7\nv_mul_f32 v{21+2*i}, v{21+2*i}, v7\nv_cvt_pk_bf16_f32 v{10+i}, v{20+2*i}, v{21+2*i}')
    a('v_lshrrev_b32 v4, 5, v0\nv_mul_u32_u24 v4, 1296, v4\nv_lshl_add_u32 v4, v2, 3, v4')
    for i in range(5): a(f'ds_write_b64 v4, v[{10+2*i}:{11+2*i}] offset:{256*i+64}')
    a(f's_lshr_b32 s24, s2, 2\ns_mul_i32 s24, s24, 40960\ns_and_b32 s25, s2, 3\ns_lshl_b32 s25, s25, 7\ns_add_u32 s24, s24, s25\ns_waitcnt lgkmcnt(0)\ns_barrier')
    for i in range(3):
        a(f'''v_add_u32 v4, {256*i}, v0
        v_min_u32 v4, 639, v4
        v_and_b32 v5, 7, v4
        v_lshrrev_b32 v4, 3, v4
        v_mul_u32_u24 v6, 1296, v5
        v_lshl_add_u32 v6, v4, 4, v6
        ds_read_b128 v[{12+4*i}:{15+4*i}], v6 offset:64
        v_lshlrev_b32 v4, 9, v4
        v_lshl_add_u32 v{8+i}, v5, 4, v4''')
    a('s_waitcnt lgkmcnt(0)')
    for i in range(3): a(f'buffer_store_dwordx4 v[{12+4*i}:{15+4*i}], v{8+i}, s[8:11], s24 offen sc1')
    a('s_waitcnt vmcnt(0)\ns_barrier')
def census(a,lab):
    a(f'''v_mbcnt_lo_u32_b32 v10, -1, 0
    v_and_b32 v10, 7, v10
    v_lshlrev_b32 v10, 7, v10
    s_mov_b32 s82, {FLAGS+0x11000}
    s_cmp_eq_u32 s14, 0
    s_cbranch_scc0 {lab}_w
    s_mov_b32 s45, 400000
    s_mov_b64 exec, 0xff
    {lab}_p:
    buffer_load_dword v11, v10, s[8:11], s82 offen sc1
    s_waitcnt vmcnt(0)
    s_mov_b32 s28, 0''')
    for i in range(8): a(f'v_readlane_b32 s29, v11, {i}\ns_add_u32 s28, s28, s29')
    a(f'''s_cmp_ge_u32 s28, 256
    s_cbranch_scc1 {lab}_d
    s_sleep 2
    s_sub_u32 s45, s45, 1
    s_cbranch_scc0 {lab}_p
    {lab}_d:
    v_lshrrev_b32 v9, 5, v10
    v_add_u32 v9, 163584, v9
    ds_write_b32 v9, v11
    s_waitcnt lgkmcnt(0)
    s_mov_b64 exec, -1
    {lab}_w:
    s_barrier
    v_lshrrev_b32 v10, 5, v10
    v_add_u32 v10, 163584, v10
    ds_read_b32 v11, v10
    s_waitcnt lgkmcnt(0)''')
    for i in range(8): a(f'v_readlane_b32 s{82+i}, v11, {i}')
    a(f's_barrier\ns_min_u32 s29, s82, s83\ns_cmp_ge_u32 s29, {1000 if FORCE_SLOW[0] else 32}')
FORCE_SLOW=[False]
def gen_dispatch(a,force_slow=False):
    FORCE_SLOW[0]=force_slow
    a(f'''s_cmp_ge_u32 s2, 256
    s_cbranch_scc1 main_end0
    s_load_dwordx4 s[4:7], s[0:1], 96
    {'s_memrealtime s[92:93]' if 'rt' in chain.OPT else ''}
    s_getreg_b32 s80, hwreg(HW_REG_XCC_ID, 0, 3)
    v_lshrrev_b32 v1, 6, v0
    s_nop 0
    v_readfirstlane_b32 s14, v1
    s_waitcnt lgkmcnt(0)
    s_mov_b64 s[90:91], s[4:5]''')
    srd(a,8,6,WS_BYTES)
    a(f'''v_mov_b32 v60, 0
    v_mov_b32 v61, 1
    s_or_b32 s28, s2, s14
    s_cbranch_scc1 tk_skip
    v_lshlrev_b32 v2, 4, v0
    v_mov_b32 v4, 0
    v_mov_b32 v5, 0
    v_mov_b32 v6, 0
    v_mov_b32 v7, 0
    s_mov_b32 s28, {FLAGS+0x11000}
    buffer_store_dwordx4 v[4:7], v2, s[8:11], s28 offen sc1
    s_waitcnt vmcnt(0)
    global_store_dword v60, v61, s[90:91] sc1
    tk_skip:''')
    if 'nowarm' not in chain.OPT:
        a(f'''s_cmp_eq_u32 s14, 1
        s_cbranch_scc0 wm_skip
        s_load_dwordx8 s[64:71], s[0:1], 16
        v_and_b32 v2, 63, v0
        v_lshlrev_b32 v3, 21, v2
        buffer_load_dword v50, v3, s[8:11], 0 offen
        s_mov_b32 s28, 0x8000000
        buffer_load_dword v51, v3, s[8:11], s28 offen
        s_getpc_b64 s[28:29]
        s_lshr_b32 s24, s2, 3
        s_min_u32 s24, s24, {{NCH}}
        s_lshl_b32 s24, s24, 13
        s_add_u32 s28, s28, s24
        s_addc_u32 s29, s29, 0
        v_lshlrev_b32 v4, 7, v2
        v_mov_b32 v5, s29
        v_add_co_u32 v4, vcc, s28, v4
        s_nop 1
        v_addc_co_u32 v5, vcc, 0, v5, vcc
        global_load_dword v52, v[4:5], off
        v_min_u32 v3, 59, v2
        v_lshlrev_b32 v3, 17, v3
        s_waitcnt lgkmcnt(0)
        global_load_dword v53, v3, s[64:65]
        global_load_dword v54, v3, s[66:67]
        global_load_dword v55, v3, s[68:69]
        global_load_dword v56, v3, s[70:71]
        wm_skip:''')
    gen_init(a)
    a('''s_cmp_eq_u32 s14, 0
    s_cbranch_scc0 ar_skip
    s_mov_b64 exec, 1
    s_mov_b32 s45, 400000
    zr_p:
    global_load_dword v62, v60, s[90:91] sc1
    s_waitcnt vmcnt(0)
    v_cmp_ne_u32 vcc, 0, v62
    s_cbranch_vccnz zr_d
    s_sub_u32 s45, s45, 1
    s_cbranch_scc0 zr_p
    zr_d:
    s_lshl_b32 s28, s80, 7
    s_add_u32 s28, s28, CENADDR
    v_mov_b32 v62, 1
    buffer_atomic_add v62, v60, s[8:11], s28 offen sc0 sc1
    s_waitcnt vmcnt(0)
    v_mov_b32 v2, 0
    ds_write_b32 v2, v62
    s_waitcnt lgkmcnt(0)
    s_mov_b64 exec, -1
    ar_skip:
    s_barrier
    v_mov_b32 v2, 0
    ds_read_b32 v3, v2
    s_waitcnt lgkmcnt(0)
    v_readfirstlane_b32 s81, v3
    s_barrier
    s_lshl_b32 s17, s80, 5
    s_add_u32 s17, s17, s81
    RTSTAMP
    s_mov_b32 s79, 0
    s_cmp_lt_u32 s80, 2
    s_cselect_b32 s28, s81, 99
    s_cmp_lt_u32 s28, 32
    s_cbranch_scc1 role_chain
    redispatch:'''.replace('CENADDR',str(FLAGS+0x11000)).replace('RTSTAMP','s_memrealtime s[94:95]' if 'rt' in chain.OPT else ''))
    census(a,'cen')
    a('s_cselect_b32 s79, 0, 1\ns_mov_b32 s28, 0')
    for i in range(7): a(f's_cmp_gt_u32 s80, {i}\ns_cselect_b32 s29, s{82+i}, 0\ns_add_u32 s28, s28, s29')
    a(f'''s_add_u32 s17, s28, s81
    s_cmp_eq_u32 s79, 1
    s_cbranch_scc1 cen_pub
    s_cmp_eq_u32 s80, 0
    s_cselect_b32 s29, 32, 0
    s_add_u32 s17, s17, s29
    cen_pub:
    s_cmp_ge_u32 s17, 64
    s_cbranch_scc1 role_worker
    role_chain:
    s_lshr_b32 s12, s17, 5
    s_and_b32 s13, s17, 15
    s_lshl_b32 s15, s12, 4
    s_add_u32 s15, s15, s13
    s_bitcmp1_b32 s17, 4
    s_cbranch_scc1 role_V
    s_load_dwordx4 s[4:7], s[0:1], 16
    s_waitcnt lgkmcnt(0)''')
    srd(a,20,4,7864320); srd(a,24,6,7864320)
    a('s_cmp_eq_u32 s79, 1\ns_cbranch_scc1 role_S_slow\ns_branch role_S_fast\nrole_V:\ns_load_dwordx4 s[4:7], s[0:1], 32\ns_waitcnt lgkmcnt(0)')
    srd(a,20,4,7864320); srd(a,24,6,7864320)
    a('s_cmp_eq_u32 s79, 1\ns_cbranch_scc1 role_V_slow\ns_branch role_V_fast\nmain_end0:\ns_endpgm')
def verify(a,lab):
    census(a,lab); a('s_cbranch_scc0 redispatch')
def gen_main(a,prof,overlap,worker,force_slow=False):
    gen_dispatch(a,force_slow)
    a('role_S_fast:'); chain.gen_S(a,0,prof,overlap,lambda:verify(a,'vs')); a('s_endpgm')
    a('role_V_fast:'); chain.gen_V(a,0,prof,overlap,lambda:verify(a,'vv')); a('s_endpgm')
    a('role_S_slow:\ns_branch role_S_slow2\nrole_V_slow:\ns_branch role_V_slow2')
    a('role_worker:\ns_sub_u32 s17, s17, 64'); worker(a); a('s_endpgm')
    a('role_S_slow2:'); chain.gen_S(a,1,prof,overlap); a('s_endpgm')
    a('role_V_slow2:'); chain.gen_V(a,1,prof,overlap); a('s_endpgm')
def build_any(prof,overlap,wk,force_slow):
    b=Asm(); gen_main(b,prof,overlap,wk,force_slow)
    t=b.text(); n=sum(1 for l in t[:t.index('role_S_slow2:')].split('\n') if l.startswith(' ')); b.L=[l.replace('{NCH}',str(n*7//8192-1)) for l in b.L]
    return ('; @launch grid=(256,1,1) block=(256,1,1) lds=163840\n.amdgcn_target "amdgcn-amd-amdhsa--gfx950"\n'+khead(NAME+'_kernel')+b.text()+kdesc(NAME+'_kernel',512,256))
def build_chain_test(prof=True,force_slow=False): return build_any(prof,False,lambda a:None,force_slow)
def build_full(prof=False,force_slow=False): return build_any(prof,True,worker.gen_worker,force_slow)
if __name__=='__main__':
    import sys
    for o in sys.argv[1:]:
        chain.OPT=set(o.split('+'))
        for x in chain.OPT:
            if x=='cpA': chain.CPS=[9,11,13,16,20,24,34,40,46]
            if x=='cpB': chain.CPS=[10,14,18,22,25,28,42,47,52]
            if x.startswith('slw'): worker.SLW=int(x[3:])
            if x.startswith('slp'): chain.SLP=int(x[3:])
            if x.startswith('efd'): chain.EFD=int(x[3:])
            if x.startswith('ux'): chain.UX0,chain.UXS=int(x[2]),int(x[3])
        if 'full' in o:
            open(f'f_{o}.s','w').write(build_full('prof' in o,'slow' in o)); continue
        t=build_chain_test(True)
        if 'solo' in o:
            L=[];inl=False
            for l in t.split('\n'):
                if l.startswith('Sstep') or l.startswith('Vstep'): inl=True
                if 's_endpgm' in l: inl=False
                if inl and l.strip().startswith('buffer_') and 'v1, v0' not in l: continue
                if inl: l=l.replace('s_cbranch_vccz ok','s_branch ok')
                L.append(l)
            t='\n'.join(L)
        open(f'ch_{o}_p.s','w').write(t)
        open(f'ch_{o}_n.s','w').write(build_chain_test(False))
```
